```python
import torch

def _softmax(x, axis=-1):
    return torch.softmax(x, dim=axis)
def _gelu(x):
    return torch.nn.functional.gelu(x, approximate="tanh")
def _silu(x):
    return torch.nn.functional.silu(x)
def _sigmoid(x):
    return torch.sigmoid(x)
def _layernorm(x, axis=-1, eps=1e-5):
    m = x.mean(dim=axis, keepdim=True)
    v = x.var(dim=axis, keepdim=True, unbiased=False)
    return (x - m) / torch.sqrt(v + eps)
def _scatter_add(tgt, idx, src, axis=0):
    return tgt.clone().index_add_(axis, idx, src)
def _segment_sum(src, seg, n):
    out = torch.zeros((n,) + src.shape[1:], dtype=src.dtype)
    return out.index_add_(0, seg, src)
def _pad(x, pw):
    flat = tuple(v for pair in reversed(pw) for v in pair)
    return torch.nn.functional.pad(x, flat)

kernel_name = 'concat_heads__mha_block__ssm_conv_s4__prompt'

def setup_inputs():

    _w = (lambda a: (lambda t: t.to(torch.bfloat16) if t.is_floating_point() else t)(torch.as_tensor(a)))
    def _A_setup():
        B, S, D, H = 1, 2048, 640, 32
        return {
            "x": _w((lambda *s: torch.randn(*s, dtype=torch.bfloat16) * 0.2)(B, S, D)),
            "wqkv": _w((lambda *s: torch.randn(*s, dtype=torch.bfloat16) * 0.2)(D, 3 * D)),
            "wo": _w((lambda *s: torch.randn(*s, dtype=torch.bfloat16) * 0.05)(D, D)),
        }
    _A_in = _A_setup()

    def _B_setup():
        B, L, D, N = 1, 2048, 640, 128
        A_re = -(lambda _x: torch.exp(torch.as_tensor(_x)))((lambda *s: torch.randn(*s, dtype=torch.bfloat16) * 3.2)(D, N))
        A_im = torch.pi * (lambda *s: torch.randn(*s, dtype=torch.bfloat16) * 0.1)(D, N)
        B_re = (lambda *s: torch.randn(*s, dtype=torch.bfloat16) * 0.4)(D, N)
        B_im = (lambda *s: torch.randn(*s, dtype=torch.bfloat16) * 0.4)(D, N)
        C_re = (lambda *s: torch.randn(*s, dtype=torch.bfloat16) * 0.4)(D, N)
        C_im = (lambda *s: torch.randn(*s, dtype=torch.bfloat16) * 0.4)(D, N)
        log_dt = (lambda *s: torch.randn(*s, dtype=torch.bfloat16) * 0.1)(D) * 0.5 - 4.0
        Dskip = (lambda *s: torch.randn(*s, dtype=torch.bfloat16) * 0.2)(D)
        return {
            "u": _w((lambda *s: torch.randn(*s, dtype=torch.bfloat16) * 0.05)(B, L, D)),
            "A_re": _w(A_re),
            "A_im": _w(A_im),
            "B_re": _w(B_re),
            "B_im": _w(B_im),
            "C_re": _w(C_re),
            "C_im": _w(C_im),
            "log_dt": _w(log_dt),
            "Dskip": _w(Dskip),
        }
    _B_in = _B_setup()

    return {
        "A_x": _A_in["x"],
        "A_wqkv": _A_in["wqkv"],
        "A_wo": _A_in["wo"],
        "B_u": _B_in["u"],
        "B_A_re": _B_in["A_re"],
        "B_A_im": _B_in["A_im"],
        "B_B_re": _B_in["B_re"],
        "B_B_im": _B_in["B_im"],
        "B_C_re": _B_in["C_re"],
        "B_C_im": _B_in["C_im"],
        "B_log_dt": _B_in["log_dt"],
        "B_Dskip": _B_in["Dskip"],
    }

def reference(A_x, A_wqkv, A_wo, B_u, B_A_re, B_A_im, B_B_re, B_B_im, B_C_re, B_C_im, B_log_dt, B_Dskip):
    def _A_ref(x, wqkv, wo):
        B, S, D = x.shape
        H = 32
        Dh = D // H
        qkv = (lambda x, *d: x.permute(*d))((x @ wqkv).reshape(B, S, 3, H, Dh), 2, 0, 3, 1, 4)
        q, k, v = qkv[0], qkv[1], qkv[2]
        scores = torch.einsum("bhqd,bhkd->bhqk", q, k) * (Dh ** -0.5)
        p = _softmax(scores, axis=-1)
        o = torch.einsum("bhqk,bhkd->bhqd", p, v)
        return (lambda x, *d: x.permute(*d))(o, 0, 2, 1, 3).reshape(B, S, D) @ wo

    def _B_ref(u, A_re, A_im, B_re, B_im, C_re, C_im, log_dt, Dskip):
        Bsz, L, D = u.shape
        dt = torch.exp(log_dt)[:, None]
        A = A_re + 1j * A_im
        Bc = B_re + 1j * B_im
        Cc = C_re + 1j * C_im
        logdA = dt * A
        dB = dt * Bc
        l = (lambda x, dt: x.to(dt))(torch.arange(L), A_re.dtype)
        P = torch.exp(logdA[:, :, None] * l[None, None, :])
        K = torch.einsum("dn,dnl,dn->dl", Cc, P, dB).real
        L2 = 2 * L
        Kp = _pad(K, ((0, 0), (0, L)))
        up = (lambda x, *d: x.permute(*d))(u, 0, 2, 1)
        up = _pad(up, ((0, 0), (0, 0), (0, L)))
        Kf = (lambda x, axes=(-2,-1): torch.fft.rfft2(x.float(), dim=axes))(Kp[:, None, :], axes=(-2, -1))
        Uf = (lambda x, axes=(-2,-1): torch.fft.rfft2(x.float(), dim=axes))(up[:, :, None, :], axes=(-2, -1))
        Yf = Uf * Kf[None, :, :, :]
        y = (lambda x, s, axes=(-2,-1): torch.fft.irfft2(x, s=s, dim=axes).to(torch.bfloat16))(Yf, (1, L2), axes=(-2, -1))[:, :, 0, :L]
        y = (lambda x, *d: x.permute(*d))(y, 0, 2, 1) + u * Dskip[None, None, :]
        return y

    a = _A_ref(A_x, A_wqkv, A_wo)
    b = _B_ref(B_u, B_A_re, B_A_im, B_B_re, B_B_im, B_C_re, B_C_im, B_log_dt, B_Dskip)
    return torch.concatenate([a, b], axis=-1)
```

```python
class Asm:
    def __init__(self):
        self.lines = []
        self._lbl = 0
    def __call__(self, s):
        for l in s.strip("\n").split("\n"):
            self.lines.append("    " + l.strip() if not l.strip().endswith(":") else l.strip())
    def label(self, base="L"):
        self._lbl += 1
        return f"{base}_{self._lbl}"
    def comment(self, s):
        self.lines.append("    ; " + s)
    def text(self):
        return "\n".join(self.lines) + "\n"

def vr(base, n=1):
    return f"v{base}" if n == 1 else f"v[{base}:{base+n-1}]"
def sr(base, n=1):
    return f"s{base}" if n == 1 else f"s[{base}:{base+n-1}]"
def ar(base, n=1):
    return f"a{base}" if n == 1 else f"a[{base}:{base+n-1}]"

def kernel_header(name):
    return f""".globl {name}
.p2align 8
.type {name},@function
{name}:
"""

def kernel_desc(name, vgpr, sgpr=102, accum=None, ieee=None, denorm32=None):
    if accum is None:
        accum = (vgpr + 3) // 4 * 4
    extra = ""
    if ieee is not None:
        extra += f"  .amdhsa_ieee_mode {ieee}\n"
    if denorm32 is not None:
        extra += f"  .amdhsa_float_denorm_mode_32 {denorm32}\n"
    return f""".p2align 6
.amdhsa_kernel {name}
  .amdhsa_next_free_vgpr {vgpr}
  .amdhsa_next_free_sgpr {sgpr}
  .amdhsa_accum_offset {accum}
  .amdhsa_group_segment_fixed_size 0
  .amdhsa_kernarg_size 120
  .amdhsa_user_sgpr_count 2
  .amdhsa_user_sgpr_kernarg_segment_ptr 1
  .amdhsa_system_sgpr_workgroup_id_x 1
{extra}.end_amdhsa_kernel
"""

KA = dict(x=0, wqkv=8, wo=16, u=24, A_re=32, A_im=40, B_re=48, B_im=56, C_re=64, C_im=72,
          log_dt=80, Dskip=88, out=96, dbg=104, ws=112)

WS_KV = 0
KV_HEAD = 163840
KV_GRP = 5120
WS_Q = 32 * KV_HEAD
Q_HEAD = 81920
Q_GRP = 2560
WS_O = WS_Q + 32 * Q_HEAD
O_BYTES = 2048 * 640 * 2
CH_STRIDE = 8704
CH_K = 448
CH_U = 4608
WS_CH = WS_O + O_BYTES
CH_BYTES = 640 * CH_STRIDE
WS_YT = WS_CH + CH_BYTES
WS_END = WS_YT + O_BYTES

import struct
def f32bits(x):
    return struct.unpack("<I", struct.pack("<f", x))[0]
def hx(x):
    return hex(f32bits(x))

def make_srd(a, d, base_lo, base_hi, nbytes, off=0):
    if off:
        a(f"s_add_u32 s{d}, s{base_lo}, {off}")
        a(f"s_addc_u32 s{d+1}, s{base_hi}, 0")
    else:
        a(f"s_mov_b32 s{d}, s{base_lo}")
        a(f"s_mov_b32 s{d+1}, s{base_hi}")
    a(f"s_mov_b32 s{d+2}, {nbytes}")
    a(f"s_mov_b32 s{d+3}, 0x00020000")

STAMP = {"on": False, "kid": 0}
WS_STAMP = 128 << 20
def stamp(a, idx, real=False):
    if not STAMP["on"]: return
    a(f"s_memrealtime s[98:99]" if real else f"s_memtime s[98:99]")
    a("s_waitcnt lgkmcnt(0)")
    a(f"s_mov_b32 s{80+idx}, s98")
def stamp_begin(a):
    if not STAMP["on"]: return
    a("s_memrealtime s[98:99]")
    a("s_memtime s[96:97]")
    a("s_waitcnt lgkmcnt(0)")
    a("s_mov_b32 s80, s98")
    a("s_mov_b32 s81, s96")
    for i in range(2, 16):
        a(f"s_mov_b32 s{80+i}, 0")
    a("v_mov_b32 v@SA@, v0")
    a("s_mov_b32 s79, s2")
def stamp_end(a):
    if not STAMP["on"]: return
    a("s_waitcnt vmcnt(0) lgkmcnt(0)")
    a("s_memrealtime s[98:99]")
    a("s_memtime s[96:97]")
    a("s_load_dwordx2 s[76:77], s[0:1], 112")
    a("s_waitcnt lgkmcnt(0)")
    a("s_mov_b32 s95, s98")
    a("s_mov_b32 s94, s96")
    a(f"s_add_u32 s72, s76, {WS_STAMP + STAMP['kid']*(1<<20)}")
    a("s_addc_u32 s73, s77, 0")
    a(f"s_mov_b32 s74, {1<<20}")
    a("s_mov_b32 s75, 0x00020000")
    a("s_mov_b64 exec, -1")
    a("v_lshrrev_b32 v@SB@, 6, v@SA@")
    a("s_lshl_b32 s79, s79, 4")
    a("v_add_u32 v@SB@, s79, v@SB@")
    a("v_lshlrev_b32 v@SB@, 6, v@SB@")
    a("s_mov_b64 exec, 1")
    for i in range(16):
        a(f"v_mov_b32 v@SC@, s{80+i}")
        a(f"buffer_store_dword v@SC@, v@SB@, s[72:75], 0 offen offset:{4*i}")
        a("s_nop 1")
```

```python
from asmlib import *
import math, os

QSCALE = math.log2(math.e) / math.sqrt(20.0)
NS = 4
AUX_LDS = NS * 32768
AUX_W = 8448

def gen_gemm(a, done_label):
    S_X, S_W, S_WS = 4, 6, 8
    SRD_X, SRD_W, SRD_O = 12, 16, 20
    S_TM, S_TN, S_WAVE = 24, 25, 3
    S_T0, S_T1, S_T2, S_T3 = 27, 28, 29, 30
    S_SX, S_SW = 31, 32
    S_M0X = 33
    S_HS, S_GS, S_GB = 34, 35, 37
    S_SCALE = 38
    V_LANE = 1
    V_VX = 2
    V_VW = 6
    nsets = (NS + 1) // 2
    V_XA = 10
    V_WA = V_XA + 4 * nsets
    V_T = V_WA + 2 * nsets
    V_EA = V_T + 8
    V_FR = (V_EA + 16 + 3) // 4 * 4
    V_ACC = V_FR + 64
    V_END = V_ACC + 64

    a(f"s_load_dwordx4 s[{S_X}:{S_X+3}], s[0:1], {KA['x']}")
    a(f"s_load_dwordx2 s[{S_WS}:{S_WS+1}], s[0:1], {KA['ws']}")
    a("s_setprio 2")
    MAP = os.environ.get("QMAP", "0")
    if MAP == "0":
        a(f"s_and_b32 s{S_T0}, s2, 7")
        a(f"s_lshr_b32 s{S_T1}, s2, 3")
        a(f"s_and_b32 s{S_T2}, s{S_T1}, 1")
        a(f"s_lshl_b32 s{S_TM}, s{S_T0}, 1")
        a(f"s_add_u32 s{S_TM}, s{S_TM}, s{S_T2}")
        a(f"s_lshr_b32 s{S_TN}, s{S_T1}, 1")
    else:
        a(f"s_lshr_b32 s{S_T1}, s2, 3")
        a(f"s_bfe_u32 s{S_T0}, s2, 0x10002")
        a(f"s_mul_i32 s{S_T0}, s{S_T0}, 30")
        a(f"s_add_u32 s{S_T1}, s{S_T1}, s{S_T0}")
        a(f"s_lshr_b32 s{S_TN}, s{S_T1}, 2")
        a(f"s_and_b32 s{S_T1}, s{S_T1}, 3")
        a(f"s_and_b32 s{S_T0}, s2, 3")
        a(f"s_lshl_b32 s{S_TM}, s{S_T0}, 2")
        a(f"s_add_u32 s{S_TM}, s{S_TM}, s{S_T1}")
    L = V_LANE
    T = V_T
    a(f"v_and_b32 v{L}, 63, v0")
    a(f"v_lshrrev_b32 v{T}, 3, v{L}")
    a(f"v_mul_u32_u24 v{T}, 1280, v{T}")
    a(f"v_and_b32 v{T+1}, 7, v{L}")
    a(f"v_lshrrev_b32 v{T+2}, 4, v{L}")
    a(f"v_xor_b32 v{T+1}, v{T+1}, v{T+2}")
    a(f"v_lshlrev_b32 v{T+1}, 4, v{T+1}")
    a(f"v_xor_b32 v{T+3}, 64, v{T+1}")
    a(f"s_lshl_b32 s{S_T0}, s{S_TM}, 2")
    a(f"s_add_u32 s{S_T0}, s{S_T0}, s{S_WAVE}")
    a(f"s_mul_i32 s{S_T0}, s{S_T0}, {32*1280}")
    a(f"v_add_u32 v{T}, s{S_T0}, v{T}")
    a(f"v_add_u32 v{V_VX}, v{T}, v{T+1}")
    a(f"v_add_u32 v{V_VX+1}, v{T}, v{T+3}")
    a(f"v_add_u32 v{V_VX+2}, {2*(10240-1024)}, v{V_VX}")
    a(f"v_add_u32 v{V_VX+3}, {3*(10240-1024)}, v{V_VX+1}")
    a(f"v_add_u32 v{V_VX+1}, {1*(10240-1024)}, v{V_VX+1}")
    a(f"v_mul_u32_u24 v{T}, 3840, v{T+2}")
    a(f"v_and_b32 v{T+1}, 15, v{L}")
    a(f"v_lshlrev_b32 v{T+3}, 2, v{T+2}")
    a(f"v_xor_b32 v{T+1}, v{T+1}, v{T+3}")
    a(f"v_lshlrev_b32 v{T+1}, 4, v{T+1}")
    a(f"s_mul_i32 s{S_T0}, s{S_WAVE}, {16*3840}")
    a(f"s_lshl_b32 s{S_T1}, s{S_TN}, 8")
    a(f"s_add_u32 s{S_T0}, s{S_T0}, s{S_T1}")
    a(f"v_add3_u32 v{V_VW}, v{T}, v{T+1}, s{S_T0}")
    for jj in range(1, 4):
        a(f"v_add_u32 v{V_VW+jj}, {jj*(4*3840-1024)}, v{V_VW}")
    a(f"s_lshl_b32 s{S_M0X}, s{S_WAVE}, 12")
    a(f"s_mov_b32 s{SRD_X+2}, {2048*640*2}")
    a(f"s_mov_b32 s{SRD_X+3}, 0x00020000")
    a(f"s_mov_b32 s{SRD_W+2}, {640*1920*2}")
    a(f"s_mov_b32 s{SRD_W+3}, 0x00020000")
    a(f"s_waitcnt lgkmcnt(0)")
    a(f"s_mov_b64 s[{SRD_X}:{SRD_X+1}], s[{S_X}:{S_X+1}]")
    a(f"s_mov_b64 s[{SRD_W}:{SRD_W+1}], s[{S_W}:{S_W+1}]")

    issued = []
    def dma_items(step):
        sl = step % NS
        items = []
        for half in range(2):
            for jj in range(4):
                def f(half=half, jj=jj):
                    if jj == 0:
                        a(f"s_add_u32 m0, s{S_M0X}, {sl*32768+16384*half}")
                        if half == 0:
                            a(f"s_movk_i32 s{S_SX}, {step*128}")
                        else:
                            a(f"s_mov_b32 s{S_SW}, {step*64*3840}")
                    if half == 0:
                        a(f"buffer_load_dwordx4 v{V_VX+jj}, s[{SRD_X}:{SRD_X+3}], s{S_SX} offen offset:{1024*jj} lds")
                    else:
                        a(f"buffer_load_dwordx4 v{V_VW+jj}, s[{SRD_W}:{SRD_W+3}], s{S_SW} offen offset:{1024*jj} lds")
                    issued.append(step)
                items.append(f)
        return items
    stamp(a, 2)
    NPRE = int(os.environ.get("NPRE", "2"))
    for st in range(NPRE):
        for f in dma_items(st): f()
    stamp(a, 3)
    make_srd(a, SRD_O, S_WS, S_WS+1, WS_O)

    a(f"s_lshr_b32 s{S_T0}, s{S_WAVE}, 1")
    a(f"s_and_b32 s{S_T1}, s{S_WAVE}, 1")
    a(f"v_and_b32 v{T}, 31, v{L}")
    a(f"v_lshrrev_b32 v{T+1}, 5, v{L}")
    a(f"v_bfe_u32 v{T+2}, v{L}, 1, 3")
    a(f"v_xor_b32 v{T+2}, v{T+2}, v{T+1}")
    a(f"v_lshlrev_b32 v{T+2}, 4, v{T+2}")
    a(f"v_lshl_add_u32 v{T+2}, v{T}, 7, v{T+2}")
    a(f"s_lshl_b32 s{S_T2}, s{S_T0}, 13")
    a(f"v_add_u32 v{V_XA}, s{S_T2}, v{T+2}")
    for ks in range(1, 4):
        a(f"v_xor_b32 v{V_XA+ks}, {ks*32}, v{V_XA}")
    a(f"v_bfe_u32 v{T+2}, v{L}, 2, 2")
    a(f"v_lshl_add_u32 v{T+3}, v{T+1}, 3, v{T+2}")
    a(f"v_lshlrev_b32 v{T+3}, 8, v{T+3}")
    a(f"v_bfe_u32 v{T+4}, v{L}, 4, 1")
    a(f"v_lshlrev_b32 v{T+4}, 5, v{T+4}")
    a(f"v_and_b32 v{T+5}, 3, v{L}")
    a(f"v_lshl_add_u32 v{T+4}, v{T+5}, 3, v{T+4}")
    a(f"v_add_u32 v{T+3}, v{T+3}, v{T+4}")
    a(f"v_add_u32 v{T+3}, 16384, v{T+3}")
    a(f"s_lshl_b32 s{S_T2}, s{S_T1}, 1")
    a(f"v_xor_b32 v{T+4}, s{S_T2}, v{T+2}")
    a(f"v_lshl_add_u32 v{V_WA}, v{T+4}, 6, v{T+3}")
    a(f"v_xor_b32 v{V_WA+1}, 64, v{V_WA}")
    for s in range(1, nsets):
        for ks in range(4):
            a(f"v_add_u32 v{V_XA+4*s+ks}, {65536*s}, v{V_XA+ks}")
        for f in range(2):
            a(f"v_add_u32 v{V_WA+2*s+f}, {65536*s}, v{V_WA+f}")

    lbl_v = a.label("L_qkv_v")
    a(f"s_lshl_b32 s{S_T2}, s{S_TM}, 1")
    a(f"s_add_u32 s{S_T2}, s{S_T2}, s{S_T0}")
    a(f"s_cmp_ge_u32 s{S_TN}, 10")
    a(f"s_cbranch_scc1 {lbl_v}")
    a(f"s_cmp_ge_u32 s{S_TN}, 5")
    a(f"s_cselect_b32 s{S_GS}, 1, 0")
    a(f"s_cselect_b32 s{S_GB}, {WS_KV}, {WS_Q}")
    a(f"s_cselect_b32 s{S_T3}, 5, 0")
    a(f"s_lshl_b32 s{S_HS}, {Q_HEAD}, s{S_GS}")
    a(f"s_lshl_b32 s{S_GS}, {Q_GRP}, s{S_GS}")
    a(f"s_mov_b32 s{S_SCALE}, {hx(QSCALE)}")
    a(f"s_mov_b32 s{S_SCALE+1}, {hx(QSCALE)}")
    a(f"s_sub_u32 s{S_T3}, s{S_TN}, s{S_T3}")
    a(f"s_mul_i32 s{S_T2}, s{S_T2}, s{S_GS}")
    a(f"s_add_u32 s{S_GB}, s{S_GB}, s{S_T2}")
    a(f"s_lshl_b32 s{S_T3}, s{S_T3}, 5")
    a(f"s_lshl_b32 s{S_T2}, s{S_T1}, 4")
    a(f"s_add_u32 s{S_T3}, s{S_T3}, s{S_T2}")
    a(f"v_add_u32 v{T+2}, s{S_T3}, v{T+1}")
    for ff in range(2):
        for rq in range(4):
            e = V_EA + (ff*4+rq)*2
            a(f"v_add_u32 v{T+3}, {8*ff+2*rq}, v{T+2}")
            a(f"v_mul_u32_u24 v{T+4}, 205, v{T+3}")
            a(f"v_lshrrev_b32 v{T+4}, 10, v{T+4}")
            a(f"v_mad_i32_i24 v{T+3}, v{T+4}, -5, v{T+3}")
            a(f"v_mul_u32_u24 v{T+4}, s{S_HS}, v{T+4}")
            a(f"v_lshrrev_b32 v{T+5}, 2, v{T+3}")
            a(f"v_lshrrev_b32 v{T+6}, 1, v{T+3}")
            a(f"v_lshl_add_u32 v{T+6}, v{T+5}, 1, v{T+6}")
            a(f"v_lshl_add_u32 v{T+4}, v{T+6}, 9, v{T+4}")
            a(f"v_and_b32 v{T+6}, 1, v{T+3}")
            a(f"v_lshl_add_u32 v{T+4}, v{T+6}, 3, v{T+4}")
            a(f"v_sub_u32 v{T+6}, 4, v{T+5}")
            a(f"v_lshlrev_b32 v{T+6}, v{T+6}, v{T}")
            a(f"v_add3_u32 v{e}, v{T+4}, v{T+6}, s{S_GB}")
            a(f"v_mul_u32_u24 v{T+5}, 768, v{T+5}")
            a(f"v_sub_u32 v{T+5}, 1024, v{T+5}")
            a(f"v_add_u32 v{e+1}, v{e}, v{T+5}")

    def reads(u):
        t, ks = divmod(u, 4)
        sl = t % NS
        st, so = divmod(sl, 2)
        fb = V_FR + 16 * (u % 4)
        for f in range(2):
            a(f"ds_read_b128 {vr(fb+4*f,4)}, v{V_XA+4*st+ks} offset:{so*32768+4096*f}")
        for f in range(2):
            for rd in range(2):
                a(f"ds_read_b64_tr_b16 {vr(fb+8+4*f+2*rd,2)}, v{V_WA+2*st+f} offset:{so*32768+4096*ks+1024*rd}")

    def mfmas(u, vmode, q, per):
        fb = V_FR + 16 * (u % 4)
        for ft in range(2):
            for ff in range(2):
                acc = vr(V_ACC + 16*(ft*2+ff), 16)
                c = "0" if u == 0 else acc
                X = vr(fb+4*ft, 4); W = vr(fb+8+4*ff, 4)
                if vmode:
                    a(f"v_mfma_f32_32x32x16_bf16 {acc}, {X}, {W}, {c}")
                else:
                    a(f"v_mfma_f32_32x32x16_bf16 {acc}, {W}, {X}, {c}")
                n = per.pop(0) if per else 0
                for _ in range(n):
                    if q: q.pop(0)()

    def mainloop(vmode):
        del issued[8*NPRE:]
        nxt = NPRE
        for t in range(10):
            after = sum(1 for s in issued if s > t)
            a(f"s_waitcnt vmcnt({after}) lgkmcnt(0)")
            a("s_barrier")
            if t in (0, 1, 4, 9): stamp(a, {0:4, 1:5, 4:6, 9:7}[t])
            q = []
            while nxt <= min(9, t + NS - 1):
                q += dma_items(nxt); nxt += 1
            nm = 8 if t == 0 else 16
            per = [len(q)//nm + (1 if i < len(q) % nm else 0) for i in range(nm)]
            if len(q) == 8 and nm == 16:
                per = [1, 0] * 8
            reads(4*t)
            if t >= 1: mfmas(4*t-2, vmode, q, per)
            reads(4*t+1)
            if t >= 1: mfmas(4*t-1, vmode, q, per)
            reads(4*t+2)
            a("s_waitcnt lgkmcnt(12)")
            mfmas(4*t, vmode, q, per)
            reads(4*t+3)
            a("s_waitcnt lgkmcnt(12)")
            mfmas(4*t+1, vmode, q, per)
            assert not q
        a("s_waitcnt lgkmcnt(6)")
        mfmas(38, vmode, [], [])
        a("s_waitcnt lgkmcnt(0)")
        mfmas(39, vmode, [], [])
        stamp(a, 8)

    mainloop(False)
    lbl_k = a.label("L_qkv_k")
    a(f"s_cmp_ge_u32 s{S_TN}, 5")
    a("s_nop 6")
    a(f"s_cbranch_scc1 {lbl_k}")
    for r in range(0, 64, 2):
        a(f"v_pk_mul_f32 {vr(V_ACC+r,2)}, {vr(V_ACC+r,2)}, s[{S_SCALE}:{S_SCALE+1}]")
    a(f"{lbl_k}:")
    for ft in range(2):
        for ff in range(2):
            acc = V_ACC + 16*(ft*2+ff)
            for rq in range(4):
                d = V_FR + ((ft*2+ff)*4+rq)*2
                a(f"v_cvt_pk_bf16_f32 v{d}, v{acc+4*rq}, v{acc+4*rq+1}")
                a(f"v_cvt_pk_bf16_f32 v{d+1}, v{acc+4*rq+2}, v{acc+4*rq+3}")
                a(f"buffer_store_dwordx2 {vr(d,2)}, v{V_EA+(ff*4+rq)*2+ft}, s[{SRD_O}:{SRD_O+3}], 0 offen")
    a(f"s_branch {done_label}")

    a(f"{lbl_v}:")
    a(f"s_mul_i32 s{S_T2}, s{S_T2}, {KV_GRP}")
    a(f"s_add_u32 s{S_GB}, s{S_T2}, {WS_KV+2560}")
    a(f"s_sub_u32 s{S_T3}, s{S_TN}, 10")
    a(f"s_lshl_b32 s{S_T3}, s{S_T3}, 7")
    a(f"s_lshl_b32 s{S_T2}, s{S_T1}, 6")
    a(f"s_add_u32 s{S_T3}, s{S_T3}, s{S_T2}")
    a(f"s_mov_b32 s{S_HS}, {KV_HEAD}")
    a(f"v_mul_u32_u24 v{T+5}, 320, v{T+1}")
    for ff in range(2):
        a(f"v_add_u32 v{T+3}, s{S_T3}, v{T}")
        if ff:
            a(f"v_add_u32 v{T+3}, 32, v{T+3}")
        a(f"v_mul_u32_u24 v{T+4}, 3277, v{T+3}")
        a(f"v_lshrrev_b32 v{T+4}, 16, v{T+4}")
        a(f"v_mul_u32_u24 v{T+6}, 20, v{T+4}")
        a(f"v_sub_u32 v{T+3}, v{T+3}, v{T+6}")
        a(f"v_mul_u32_u24 v{T+4}, s{S_HS}, v{T+4}")
        a(f"v_lshl_add_u32 v{T+4}, v{T+3}, 4, v{T+4}")
        a(f"v_add3_u32 v{V_EA+ff}, v{T+4}, v{T+5}, s{S_GB}")
    mainloop(True)
    a("s_nop 8")
    for ft in range(2):
        for ff in range(2):
            acc = V_ACC + 16*(ft*2+ff)
            for t in range(2):
                d = V_FR + ((ft*2+ff)*2+t)*4
                for m in range(4):
                    a(f"v_cvt_pk_bf16_f32 v{d+m}, v{acc+8*t+2*m}, v{acc+8*t+2*m+1}")
                a(f"buffer_store_dwordx4 {vr(d,4)}, v{V_EA+ff}, s[{SRD_O}:{SRD_O+3}], 0 offen offset:{(2*ft+t)*640}")
    a(f"s_branch {done_label}")
    return V_END

assert all((g*205)>>10 == g//5 for g in range(160))
assert all((c*3277)>>16 == c//20 for c in range(640))
```

```python
from asmlib import *
import math

LOG2E = math.log2(math.e)
def split_hi_lo(x):
    import numpy as np
    hi = float(np.float32(x)); lo = float(np.float32(x - hi))
    return hi, lo

class BarSched:
    def __init__(self, a, points):
        self.a = a; self.points = list(points); self.start = len(a.lines)
    def tick(self):
        n = len(self.a.lines) - self.start
        while self.points and n >= self.points[0]:
            self.points.pop(0)
            self.a("s_barrier")

def gen_kgen(a, done_label, S_CH, S_LB, bar_every=62, nbar=10):
    S_P = 8
    S_LD = 20
    S_WS = 24
    SRD = 28
    S_T0, S_T1 = 32, 33
    S_DT = 34
    S_M = 36
    L = 1
    V_OFF = 2
    V_WA = 3
    V_RA = 4
    V_P = 6
    V_T = 12
    V_E1, V_E8, V_E128 = 28, 32, 36
    V_Y = 40
    V_TM = 44
    V_D = 48
    V_X = 56
    V_R1 = 88
    V_B = 104
    V_A = 136
    V_C = 168
    V_END = 180
    T = V_T
    a(f"s_load_dwordx8 s[{S_P}:{S_P+7}], s[0:1], {KA['A_re']}")
    a(f"s_load_dwordx4 s[{S_P+8}:{S_P+11}], s[0:1], {KA['C_re']}")
    a(f"s_load_dwordx4 s[{S_LD}:{S_LD+3}], s[0:1], {KA['log_dt']}")
    a(f"s_load_dwordx2 s[{S_WS}:{S_WS+1}], s[0:1], {KA['ws']}")
    a(f"v_and_b32 v{L}, 63, v0")
    a(f"s_lshl_b32 s{S_T0}, s{S_CH}, 8")
    a(f"v_lshl_add_u32 v{V_OFF}, v{L}, 2, s{S_T0}")
    a(f"s_lshl_b32 s{S_T0}, s{S_CH}, 1")
    a(f"v_mov_b32 v{T}, s{S_T0}")
    a(f"v_mov_b32 v{T+14}, 0")
    a(f"v_lshl_add_u32 v{V_WA}, v{L}, 3, s{S_LB}")
    a(f"v_and_b32 v{T+1}, 15, v{L}")
    a(f"v_mul_u32_u24 v{T+1}, 528, v{T+1}")
    a(f"v_bfe_u32 v{T+2}, v{L}, 4, 1")
    a(f"v_lshl_add_u32 v{T+1}, v{T+2}, 8, v{T+1}")
    a(f"v_lshrrev_b32 v{T+2}, 5, v{L}")
    a(f"v_lshl_add_u32 v{T+1}, v{T+2}, 7, v{T+1}")
    a(f"v_add_u32 v{V_RA}, s{S_LB}, v{T+1}")
    a("s_waitcnt lgkmcnt(0)")
    a(f"global_load_ushort v{T+15}, v{T}, s[{S_LD}:{S_LD+1}]")
    for i in range(6):
        a(f"global_load_dword v{V_P+i}, v{V_OFF}, s[{S_P+2*i}:{S_P+2*i+1}]")
    a(f"global_load_short_d16_hi v{T+14}, v{T}, s[{S_LD+2}:{S_LD+3}]")
    a(f"s_mul_i32 s{S_T0}, s{S_CH}, {CH_STRIDE}")
    a(f"s_add_u32 s{S_T0}, s{S_T0}, {WS_CH}")
    a(f"s_add_u32 s{SRD}, s{S_WS}, s{S_T0}")
    a(f"s_addc_u32 s{SRD+1}, s{S_WS+1}, 0")
    a(f"s_mov_b32 s{SRD+2}, {CH_U}")
    a(f"s_mov_b32 s{SRD+3}, 0x00020000")
    a("s_barrier")
    bs = BarSched(a, [bar_every*(i+1) for i in range(nbar-1)])
    a("s_waitcnt vmcnt(7)")
    hi, lo = split_hi_lo(LOG2E)
    x = T+15
    a(f"v_lshlrev_b32 v{x}, 16, v{x}")
    a(f"v_mul_f32 v{T}, {hx(hi)}, v{x}")
    a(f"s_mov_b32 s{S_T0}, {hx(hi)}")
    a(f"v_fma_f32 v{T+1}, v{x}, s{S_T0}, -v{T}")
    a(f"v_fmac_f32 v{T+1}, {hx(lo)}, v{x}")
    a(f"v_exp_f32 v{T}, v{T}")
    a(f"v_mul_f32 v{T+1}, {hx(math.log(2.0))}, v{T+1}")
    a(f"v_fmac_f32 v{T}, v{T}, v{T+1}")
    a(f"v_cvt_pk_bf16_f32 v{T}, v{T}, v{T}")
    a(f"v_lshlrev_b32 v{x}, 16, v{T}")
    a("s_waitcnt vmcnt(0)")
    stamp(a, 9)
    def unpack(dst, src, hh):
        if hh == 0: a(f"v_lshlrev_b32 v{dst}, 16, v{src}")
        else: a(f"v_and_b32 v{dst}, 0xffff0000, v{src}")
    def cmul(r, x_, y_, t):
        a(f"v_pk_mul_f32 {vr(t,2)}, {vr(x_,2)}, {vr(y_,2)} op_sel:[0,0] op_sel_hi:[0,1]")
        return lambda: a(f"v_pk_fma_f32 {vr(r,2)}, {vr(x_,2)}, {vr(y_,2)}, {vr(t,2)} op_sel:[1,1,0] op_sel_hi:[1,0,1] neg_lo:[0,1,0]")
    def cmul2(r, x_, y_):
        f0 = cmul(r, x_, y_, V_TM); f1 = cmul(r+2, x_+2, y_+2, V_TM+2)
        f0(); f1()
        bs.tick()
    for hh in range(2):
        zr, zi = T+2*hh, T+2*hh+1
        unpack(zr, V_P+0, hh); unpack(zi, V_P+1, hh)
        unpack(T+4+2*hh, V_P+2, hh); unpack(T+5+2*hh, V_P+3, hh)
        unpack(T+8+2*hh, V_P+4, hh); unpack(T+9+2*hh, V_P+5, hh)
        a(f"v_mul_f32 v{zr}, v{x}, v{zr}")
        a(f"v_mul_f32 v{zi}, v{x}, v{zi}")
        a(f"v_mul_f32 v{T+4+2*hh}, v{x}, v{T+4+2*hh}")
        a(f"v_mul_f32 v{T+5+2*hh}, v{x}, v{T+5+2*hh}")
        a(f"v_mul_f32 v{zr}, {hx(LOG2E)}, v{zr}")
        a(f"v_mul_f32 v{zi}, {hx(1/(2*math.pi))}, v{zi}")
    cmul2(V_X, T+8, T+4)
    for (E, m) in ((V_E8, 8.0), (V_E1, 1.0), (V_E128, 128.0)):
        for hh in range(2):
            zr, zi = T+2*hh, T+2*hh+1
            mg, an = T+4+2*hh, T+5+2*hh
            if m != 1.0:
                a(f"v_mul_f32 v{mg}, {hx(m)}, v{zr}")
                a(f"v_mul_f32 v{an}, {hx(m)}, v{zi}")
                a(f"v_exp_f32 v{mg}, v{mg}")
                a(f"v_fract_f32 v{an}, v{an}")
            else:
                a(f"v_exp_f32 v{mg}, v{zr}")
                a(f"v_fract_f32 v{an}, v{zi}")
            a(f"v_cos_f32 v{E+2*hh}, v{an}")
            a(f"v_sin_f32 v{E+2*hh+1}, v{an}")
        a("s_nop 0")
        for hh in range(2):
            mg = T+4+2*hh
            a(f"v_pk_mul_f32 {vr(E+2*hh,2)}, {vr(E+2*hh,2)}, {vr(mg,2)} op_sel:[0,0] op_sel_hi:[1,0]")
        bs.tick()
    dctr = [0]
    def emit(src, row, conj=False, dst=None):
        d = dst if dst is not None else V_D + 2*(dctr[0] % 4)
        dctr[0] += 1
        ng = "-" if conj else ""
        a(f"v_cvt_pk_bf16_f32 v{d}, v{src}, {ng}v{src+1}")
        a(f"v_cvt_pk_bf16_f32 v{d+1}, v{src+2}, {ng}v{src+3}")
        if dst is None:
            a(f"ds_write_b64 v{V_WA}, {vr(d,2)} offset:{row*528}")
    def rdfrags(base):
        for ks in range(8):
            a(f"ds_read_b128 {vr(base+4*ks,4)}, v{V_RA} offset:{16*ks}")
    def mm(tile):
        for ks in range(8):
            c = "0" if ks == 0 else vr(V_C+4*tile, 4)
            a(f"v_mfma_f32_16x16x32_bf16 {vr(V_C+4*tile,4)}, {vr(V_A+4*ks,4)}, {vr(V_B+4*ks,4)}, {c}")
    stamp(a, 10)
    a(f"v_mov_b32 v{V_D}, 0x3f80")
    a(f"v_mov_b32 v{V_D+1}, 0x3f80")
    a(f"ds_write_b64 v{V_WA}, {vr(V_D,2)}")
    dctr[0] = 1
    emit(V_E8, 1, conj=True)
    for b in range(2, 16):
        cmul2(V_Y, V_E8 if b == 2 else V_Y, V_E8)
        emit(V_Y, b, conj=True)
    rdfrags(V_B)
    stamp(a, 11)
    X = lambda j: V_X + 4*j
    emit(X(0), 0)
    for j in range(1, 8):
        cmul2(X(j), X(j-1), V_E1)
        emit(X(j), j)
    for j in range(8):
        cmul2(X(j), X(j), V_E128)
        emit(X(j), 8+j)
    rdfrags(V_A)
    for blk in range(2):
        for q, j in enumerate((0, 2, 4, 6)):
            cmul2(X(j), X(j), V_E128)
            emit(X(j), None, dst=V_R1 + 2*(4*blk+q))
    a("s_waitcnt lgkmcnt(0)")
    mm(0)
    for g in range(4):
        for q, j in enumerate((0, 4)):
            cmul2(X(j), X(j), V_E128)
            emit(X(j), 4*g+q)
    for g in range(4):
        for q in range(2):
            cmul2(X(0), X(0), V_E128)
            emit(X(0), 4*g+2+q)
    rdfrags(V_A)
    cmul2(X(0), X(0), V_E128)
    emit(X(0), 8)
    for r in range(8):
        a(f"ds_write_b64 v{V_WA}, {vr(V_R1+2*r,2)} offset:{r*528}")
    stamp(a, 12)
    a(f"v_and_b32 v{T}, 15, v{L}")
    a(f"v_lshl_add_u32 v{T}, v{T}, 4, s{S_LB}")
    a(f"v_lshrrev_b32 v{T+1}, 4, v{L}")
    a(f"v_lshl_add_u32 v{T+2}, v{T+1}, 8, v{T}")
    a(f"v_lshl_add_u32 v{T+3}, v{T+1}, 9, v{T}")
    a(f"v_lshrrev_b32 v{T+4}, 5, v{L}")
    a(f"v_lshl_add_u32 v{T+4}, v{T+4}, 8, v{T}")
    a(f"v_bfe_u32 v{T+5}, v{L}, 4, 1")
    a(f"v_lshl_add_u32 v{T+4}, v{T+5}, 3, v{T+4}")
    a(f"v_lshl_add_u32 v{T+5}, v{L}, 4, s{S_LB}")
    a(f"v_lshlrev_b32 v{T+6}, 4, v{L}")
    a("s_waitcnt lgkmcnt(9)")
    bs.tick()
    mm(1)
    rdfrags(V_A)
    for r in range(4):
        a(f"v_mov_b32 v{V_X+r}, 0")
    C0, C1, C2 = V_C, V_C+4, V_C+8
    D = V_X + 4
    a(f"s_mov_b64 exec, 0x0fffffff")
    a(f"ds_write_b128 v{T+5}, {vr(V_X,4)}")
    a(f"s_mov_b64 exec, 0xf")
    a(f"ds_write_b128 v{T+5}, {vr(V_X,4)} offset:{CH_K+4096}")
    a(f"s_mov_b64 exec, 1")
    a(f"v_add_f32 v{C0}, v{C0}, v{T+14}")
    a(f"s_mov_b64 exec, -1")
    for q in range(2):
        a(f"v_cvt_pk_bf16_f32 v{D+2*q}, v{C1+2+q}, v{C1+2+q}")
        a(f"v_cvt_pk_bf16_f32 v{D+2*q+1}, v{C1+2+q}, v{C1+2+q}")
    a(f"v_add_u32 v{T+3}, {CH_K + 2048 - 8}, v{T+3}")
    for q in range(2):
        a(f"ds_write2_b64 v{T+3}, {vr(D+2*q,2)}, {vr(D+2*q,2)} offset0:{32*q} offset1:{32*q+1}")
    a(f"s_mov_b32 s{S_M}, 0x55555555")
    a(f"s_mov_b32 s{S_M+1}, 0x55555555")
    a(f"s_mov_b64 exec, s[{S_M}:{S_M+1}]")
    for q in range(2):
        a(f"ds_write_b16 v{T+3}, v{D+2*q} offset:{256*q+16}")
    a(f"s_mov_b64 exec, -1")
    a(f"v_cvt_pk_bf16_f32 v{D+4}, v{C1}, v{C1}")
    a(f"v_cvt_pk_bf16_f32 v{D+5}, v{C1}, v{C1+1}")
    a(f"v_cvt_pk_bf16_f32 v{D+6}, v{C1+1}, v{C1+1}")
    a(f"ds_write_b32 v{T+2}, v{D+4} offset:{CH_K+1024-4}")
    a(f"ds_write_b96 v{T+2}, {vr(D+4,3)} offset:{CH_K+1024}")
    a("s_waitcnt lgkmcnt(8)")
    bs.tick()
    mm(2)
    a(f"v_cvt_pk_bf16_f32 v{D+12}, v{C0}, v{C0+1}")
    a(f"v_cvt_pk_bf16_f32 v{D+13}, v{C0+2}, v{C0+3}")
    a("s_nop 5")
    a(f"v_cvt_pk_bf16_f32 v{D+8}, v{C2}, v{C2}")
    a(f"v_cvt_pk_bf16_f32 v{D+9}, v{C2+1}, v{C2+2}")
    a(f"v_cvt_pk_bf16_f32 v{D+10}, v{C2+2}, v{C2+2}")
    a(f"v_cvt_pk_bf16_f32 v{D+11}, v{C2+3}, v{C2+3}")
    a(f"s_mov_b32 exec_hi, 0")
    a(f"ds_write_b16 v{T+2}, v{D+8} offset:{CH_K+512-2}")
    a(f"ds_write_b96 v{T+2}, {vr(D+8,3)} offset:{CH_K+512}")
    a(f"ds_write_b16 v{T+2}, v{D+11} offset:{CH_K+512+12}")
    a(f"s_mov_b32 s{S_M}, 0")
    a(f"s_mov_b32 s{S_M+1}, 1")
    a(f"s_mov_b64 exec, s[{S_M}:{S_M+1}]")
    a(f"ds_write_b32 v{T}, v{D+8} offset:{CH_K+2*2044}")
    a(f"ds_write_b32 v{T}, v{D+8} offset:{CH_K+2*2046}")
    a(f"s_mov_b64 exec, -1")
    a(f"ds_write_b64 v{T+4}, {vr(D+12,2)} offset:{CH_K}")
    for i in range(5):
        a(f"ds_read_b128 {vr(V_B+4*i,4)}, v{T+5} offset:{1024*i}")
    for i in range(5):
        a(f"s_waitcnt lgkmcnt({4-i})")
        off = 1024*i
        if off < 4096:
            a(f"buffer_store_dwordx4 {vr(V_B+4*i,4)}, v{T+6}, s[{SRD}:{SRD+3}], 0 offen offset:{off}")
        else:
            a(f"s_movk_i32 s{S_T0}, 4096")
            a(f"buffer_store_dwordx4 {vr(V_B+4*i,4)}, v{T+6}, s[{SRD}:{SRD+3}], s{S_T0} offen")
    print("kgen lines", len(a.lines) - bs.start, "unused barriers", len(bs.points))
    a(f"s_branch {done_label}")
    return V_END

def gen_utr(a, done_label, S_TILE, S_LB, nbar=4):
    S_U, S_WS = 8, 10
    SRD_U, SRD_O = 12, 16
    S_T0, S_T1, S_T2 = 20, 21, 22
    L = 1
    V_G, V_LA, V_RA, V_WB, V_SA = 2, 3, 4, 5, 6
    T = 8
    V_D = 16
    V_E = 48
    a(f"s_load_dwordx2 s[{S_U}:{S_U+1}], s[0:1], {KA['u']}")
    a(f"s_load_dwordx2 s[{S_WS}:{S_WS+1}], s[0:1], {KA['ws']}")
    a(f"v_and_b32 v{L}, 63, v0")
    a(f"s_and_b32 s{S_T0}, s{S_TILE}, 31")
    a(f"s_lshr_b32 s{S_T1}, s{S_TILE}, 5")
    a(f"v_lshrrev_b32 v{T}, 3, v{L}")
    a(f"v_and_b32 v{T+1}, 7, v{L}")
    a(f"v_lshlrev_b32 v{T+1}, 4, v{T+1}")
    a(f"v_mad_u32_u24 v{V_G}, v{T}, s{S_T2+1}, v{T+1}".replace(f"s{S_T2+1}", "SX"))
    a.lines.pop()
    a(f"v_mul_u32_u24 v{V_G}, 1280, v{T}")
    a(f"v_add_u32 v{V_G}, v{V_G}, v{T+1}")
    a(f"v_mul_u32_u24 v{V_LA}, 144, v{T}")
    a(f"v_add3_u32 v{V_LA}, v{V_LA}, v{T+1}, s{S_LB}")
    a(f"v_mul_u32_u24 v{V_SA}, {CH_STRIDE}, v{T}")
    a(f"v_add_u32 v{V_SA}, v{V_SA}, v{T+1}")
    a(f"s_mul_i32 s{S_T2}, s{S_T0}, {64*1280}")
    a(f"s_lshl_b32 s{S_T2+1}, s{S_T1}, 7")
    a(f"s_add_u32 s{S_T2}, s{S_T2}, s{S_T2+1}")
    a("s_waitcnt lgkmcnt(0)")
    make_srd(a, SRD_U, S_U, S_U+1, 2048*640*2)
    for i in range(8):
        a(f"buffer_load_dwordx4 {vr(V_D+4*i,4)}, v{V_G}, s[{SRD_U}:{SRD_U+3}], s{S_T2} offen")
        if i < 7: a(f"s_add_u32 s{S_T2}, s{S_T2}, {8*1280}")
    make_srd(a, SRD_O, S_WS, S_WS+1, CH_BYTES, off=WS_CH)
    a(f"s_mul_i32 s{S_T1}, s{S_T1}, {64*CH_STRIDE}")
    a(f"s_lshl_b32 s{S_T0}, s{S_T0}, 7")
    a(f"s_add_u32 s{S_T1}, s{S_T1}, s{S_T0}")
    a(f"s_add_u32 s{S_T1}, s{S_T1}, {CH_U}")
    a(f"v_lshrrev_b32 v{T}, 4, v{L}")
    a(f"v_bfe_u32 v{T+1}, v{L}, 2, 2")
    a(f"v_lshl_add_u32 v{T+1}, v{T}, 3, v{T+1}")
    a(f"v_mul_u32_u24 v{T+1}, 144, v{T+1}")
    a(f"v_and_b32 v{T+2}, 3, v{L}")
    a(f"v_lshlrev_b32 v{T+2}, 3, v{T+2}")
    a(f"v_add3_u32 v{V_RA}, v{T+1}, v{T+2}, s{S_LB}")
    a(f"v_and_b32 v{T+1}, 15, v{L}")
    a(f"v_mul_u32_u24 v{T+1}, 144, v{T+1}")
    a(f"v_lshlrev_b32 v{T}, 4, v{T}")
    a(f"v_add3_u32 v{V_WB}, v{T+1}, v{T}, s{S_LB}")
    a("s_barrier")
    for th in range(2):
        a(f"s_waitcnt vmcnt({4-4*th})")
        for i in range(4):
            a(f"ds_write_b128 v{V_LA}, {vr(V_D+16*th+4*i,4)} offset:{8*144*i}")
        for p in range(4):
            for jj in range(2):
                a(f"ds_read_b64_tr_b16 {vr(V_E+16*th+4*p+2*jj,2)}, v{V_RA} offset:{4*144*jj+32*p}")
    a("s_barrier")
    a("s_waitcnt lgkmcnt(0)")
    for chh in range(2):
        for th in range(2):
            for pp in range(2):
                a(f"ds_write_b128 v{V_WB}, {vr(V_E+16*th+4*(2*chh+pp),4)} offset:{16*144*pp+64*th}")
        for k in range(4):
            a(f"ds_read_b128 {vr(V_D+16*chh+4*k,4)}, v{V_LA} offset:{8*144*k}")
    a("s_barrier")
    for k in range(8):
        if k % 4 == 0:
            a(f"s_waitcnt lgkmcnt({8 if k == 0 else 0})")
        a(f"buffer_store_dwordx4 {vr(V_D+4*k,4)}, v{V_SA}, s[{SRD_O}:{SRD_O+3}], s{S_T1} offen")
        if k < 7: a(f"s_add_u32 s{S_T1}, s{S_T1}, {8*CH_STRIDE}")
    a(f"s_branch {done_label}")
    return 80
```

```python
from asmlib import *
import os

NLATE = 6
CV = (32 - NLATE) * KV_GRP
PRIV = CV + 26 * 1024
CNT = PRIV + 3 * 528
assert CNT + 16 <= 163840

def gen_attn(a, done_label):
    S_WS = 4
    SRD_KV, SRD_O = 8, 12
    S_HEAD, S_QT, S_WAVE = 16, 17, 3
    S_T0, S_T1, S_T2 = 19, 20, 21
    S_IT = 23
    S_PASS = 24
    S_VM = 26
    S_C = 28
    V_L = 1
    V_KA, V_K2A, V_VA = 2, 3, 4
    V_OA = 5
    V_T = 6
    V_Q1 = 12
    V_Q2 = 16
    V_K1 = 20
    V_K2 = 28
    V_V = 32
    V_P = 48
    V_NM = 64
    V_O = 80
    V_S = 96
    V_END = 160
    T = V_T
    a(f"s_lshr_b32 s{S_T0}, s2, 5")
    a(f"s_lshl_b32 s{S_T0}, s{S_T0}, 3")
    a(f"s_add_u32 s{S_QT}, s{S_T0}, s{S_WAVE}")
    a(f"v_lshlrev_b32 v{V_KA}, 4, v{V_L}")
    a(f"v_and_b32 v{T}, 31, v{V_L}")
    a(f"v_lshlrev_b32 v{T+1}, 3, v{T}")
    a(f"s_mul_i32 s{S_T0}, s{S_HEAD}, {Q_HEAD}")
    a(f"s_lshr_b32 s{S_T1}, s{S_QT}, 1")
    a(f"s_mul_i32 s{S_T1}, s{S_T1}, {Q_GRP}")
    a(f"s_add_u32 s{S_T0}, s{S_T0}, s{S_T1}")
    a(f"s_add_u32 s{S_T0}, s{S_T0}, {WS_Q}")
    a(f"s_and_b32 s{S_T1}, s{S_QT}, 1")
    a(f"s_lshl_b32 s{S_T2}, s{S_T1}, 8")
    a(f"s_add_u32 s{S_T2}, s{S_T2}, s{S_T0}")
    a(f"s_lshl_b32 s{S_T1}, s{S_T1}, 10")
    a(f"s_add_u32 s{S_T1}, s{S_T1}, s{S_T0}")
    a(f"s_mov_b32 s{SRD_KV+2}, {WS_O}")
    a(f"s_mov_b32 s{SRD_KV+3}, 0x00020000")
    a(f"s_waitcnt lgkmcnt(0)")
    a(f"s_mov_b64 s[{SRD_KV}:{SRD_KV+1}], s[{S_WS}:{S_WS+1}]")
    a(f"buffer_load_dwordx4 {vr(V_Q1,4)}, v{V_KA}, s[{SRD_KV}:{SRD_KV+3}], s{S_T1} offen")
    a(f"buffer_load_dwordx2 {vr(V_Q2,2)}, v{T+1}, s[{SRD_KV}:{SRD_KV+3}], s{S_T2} offen offset:2048")
    make_srd(a, SRD_O, S_WS, S_WS+1, O_BYTES, off=WS_O)
    a(f"s_mov_b32 s{S_VM}, 0x000fffff")
    a(f"s_mov_b32 s{S_VM+1}, 0x000fffff")
    a(f"s_mov_b32 s{S_PASS}, 0")
    a(f"v_lshrrev_b32 v{T+2}, 5, v{V_L}")
    a(f"s_mul_i32 s{S_T0}, s{S_HEAD}, 5")
    a(f"v_add_u32 v{T+3}, s{S_T0}, v{T+2}")
    a(f"v_lshrrev_b32 v{T+4}, 1, v{T+3}")
    a(f"v_lshlrev_b32 v{T+4}, 9, v{T+4}")
    a(f"v_and_b32 v{T+3}, 1, v{T+3}")
    a(f"v_lshl_add_u32 v{T+4}, v{T+3}, 3, v{T+4}")
    a(f"v_lshl_add_u32 v{T+4}, v{T}, 4, v{T+4}")
    a(f"s_mul_i32 s{S_T0}, s{S_QT}, 40960")
    a(f"v_add_u32 v{V_OA}, s{S_T0}, v{T+4}")
    a(f"s_mov_b32 s{S_T0}, 0x3f803f80")
    for r in range(16):
        a(f"v_mov_b32 v{V_V+r}, s{S_T0}")
    for r in range(16):
        a(f"v_mov_b32 v{V_NM+r}, 0")

    def set_addrs():
        a(f"v_lshlrev_b32 v{V_KA}, 4, v{V_L}")
        a(f"v_lshlrev_b32 v{V_K2A}, 3, v{V_L}")
        a(f"v_add_u32 v{V_K2A}, 2048, v{V_K2A}")
        a(f"v_lshrrev_b32 v{T+2}, 5, v{V_L}")
        a(f"v_mul_u32_u24 v{V_VA}, 320, v{T+2}")
        a(f"v_and_b32 v{T}, 31, v{V_L}")
        a(f"v_lshl_add_u32 v{V_VA}, v{T}, 4, v{V_VA}")
        a(f"v_add_u32 v{V_VA}, 2560, v{V_VA}")
    def zero_state():
        for r in range(16):
            a(f"v_mov_b32 v{V_O+r}, 0")
        for r in range(12, 15):
            a(f"v_mov_b32 v{V_P+r}, 0")
        a(f"v_mov_b32 v{V_S+32+30}, 0")
        a(f"v_mov_b32 v{V_S+32+31}, 0")
    set_addrs()
    zero_state()

    def rdK1(j, g):
        a(f"ds_read_b128 {vr(V_K1+4*j,4)}, v{V_KA} offset:{g*5120+1024*j}")
    def rdK2(g):
        a(f"ds_read_b64 {vr(V_K2,2)}, v{V_K2A} offset:{g*5120}")
    def rdV(js, g):
        a(f"s_mov_b64 exec, s[{S_VM}:{S_VM+1}]")
        for j in js:
            a(f"ds_read_b128 {vr(V_V+4*j,4)}, v{V_VA} offset:{g*5120+640*j}")
        a(f"s_mov_b64 exec, -1")
    def M12(j, buf, c):
        a(f"v_mfma_f32_32x32x16_bf16 {vr(V_S+32*buf+16*j,16)}, {vr(V_K1+4*j,4)}, {vr(V_Q1,4)}, {c}")
    def M3(buf):
        a(f"v_mfma_f32_32x32x4_2b_bf16 {vr(V_S+32*buf,32)}, {vr(V_K2,2)}, {vr(V_Q2,2)}, {vr(V_S+32*buf,32)}")
    def PV(j):
        a(f"v_mfma_f32_32x32x16_bf16 {vr(V_O,16)}, {vr(V_V+4*j,4)}, {vr(V_P+4*j,4)}, {vr(V_O,16)}")
    NM = vr(V_NM, 16)

    stamp(a, 2)
    a("s_waitcnt vmcnt(0)")
    a("s_barrier")
    stamp(a, 3)
    L_start = a.label("L_at_start")
    L_loop = a.label("L_at_loop")
    L_body = a.label("L_at_body")
    L_bar = a.label("L_at_bar")
    L_fb = a.label("L_at_fb")
    a(f"{L_start}:")
    rdK1(0, 0); rdK1(1, 0); rdK2(0)
    rdV([0, 1], 0)
    a("s_waitcnt lgkmcnt(2)")
    M12(0, 0, NM); M12(1, 0, NM)
    rdK1(0, 1); rdK1(1, 1)
    a("s_nop 7")
    M3(0)
    rdK2(1)
    a(f"s_mov_b32 s{S_IT}, 0")
    a("s_nop 15"); a("s_nop 0")
    stamp(a, 4)
    a(f"s_branch {L_body}")
    a(f"{L_bar}:")
    stamp(a, 5)
    a("s_barrier")
    stamp(a, 6)
    a(f"s_branch {L_body}")

    a(".p2align 6")
    a(f"{L_loop}:")
    a(f"s_bitcmp1_b32 s{S_C}, s{S_IT}")
    a(f"s_cbranch_scc1 {L_bar}")
    a(f"{L_body}:")
    for gg in range(4):
        cur = gg % 2; nxt = 1 - cur
        sc = V_S + 32*cur; sp = V_S + 32*nxt
        def U(k):
            a(f"v_exp_f32 v{sc+2*k}, v{sc+2*k}")
            a(f"v_exp_f32 v{sc+2*k+1}, v{sc+2*k+1}")
            if k == 0:
                a(f"v_cvt_pk_bf16_f32 v{V_P+15}, v{sp+30}, v{sp+31}")
            else:
                a(f"v_cvt_pk_bf16_f32 v{V_P+k-1}, v{sc+2*k-2}, v{sc+2*k-1}")
        a("s_waitcnt lgkmcnt(0)")
        M12(0, nxt, NM); rdK1(0, gg+2)
        U(0); U(1)
        PV(3); rdV([2, 3], gg)
        U(2); U(3)
        M12(1, nxt, NM); rdK1(1, gg+2)
        U(4); U(5)
        PV(0)
        U(6); U(7)
        M3(nxt); rdK2(gg+2)
        U(8); U(9); U(10); U(11)
        PV(1); rdV([0, 1], gg+1)
        U(12); U(13)
        a("s_waitcnt lgkmcnt(5)")
        PV(2)
        U(14); U(15)
    a(f"v_add_u32 v{V_KA}, 20480, v{V_KA}")
    a(f"v_add_u32 v{V_K2A}, 20480, v{V_K2A}")
    a(f"v_add_u32 v{V_VA}, 20480, v{V_VA}")
    a(f"s_add_u32 s{S_IT}, s{S_IT}, 1")
    a(f"s_cmp_lt_u32 s{S_IT}, 8")
    a(f"s_cbranch_scc1 {L_loop}")
    stamp(a, 7)
    a(f"v_cvt_pk_bf16_f32 v{V_P+15}, v{V_S+32+30}, v{V_S+32+31}")
    a("s_waitcnt lgkmcnt(0)")
    a("s_nop 0")
    PV(3)
    a(f"s_mov_b32 s{S_T0}, {hx(2.0**30)}")
    a(f"s_mov_b32 s{S_T1}, {hx(2.0**-30)}")
    a("s_nop 9")
    a(f"v_cmp_nge_f32 vcc, s{S_T0}, v{V_O+12}")
    a(f"v_cmp_nle_f32 s[{S_C+2}:{S_C+3}], s{S_T1}, v{V_O+12}")
    a(f"v_rcp_f32 v{T}, v{V_O+12}")
    L_out = a.label("L_at_out")
    a(f"s_cmp_lg_u32 s{S_PASS}, 0")
    a(f"s_cbranch_scc1 {L_out}")
    a(f"s_or_b64 vcc, vcc, s[{S_C+2}:{S_C+3}]")
    a(f"s_cbranch_scc1 {L_fb}")
    a(f"{L_out}:")
    for r in range(12):
        a(f"v_mul_f32 v{V_O+r}, v{V_O+r}, v{T}")
    for rq in range(3):
        a(f"v_cvt_pk_bf16_f32 v{V_P+2*rq}, v{V_O+4*rq}, v{V_O+4*rq+1}")
        a(f"v_cvt_pk_bf16_f32 v{V_P+2*rq+1}, v{V_O+4*rq+2}, v{V_O+4*rq+3}")
    a(f"buffer_store_dwordx2 {vr(V_P,2)}, v{V_OA}, s[{SRD_O}:{SRD_O+3}], 0 offen")
    a(f"buffer_store_dwordx2 {vr(V_P+2,2)}, v{V_OA}, s[{SRD_O}:{SRD_O+3}], 0 offen offset:512")
    a(f"s_mov_b32 exec_hi, 0")
    a(f"buffer_store_dwordx2 {vr(V_P+4,2)}, v{V_OA}, s[{SRD_O}:{SRD_O+3}], 0 offen offset:1024")
    a(f"s_branch {done_label}")

    a(f"{L_fb}:")
    a(f"s_mov_b32 s{S_PASS}, 1")
    a(f"s_mov_b32 s{S_C}, 0")
    set_addrs()
    a(f"v_mov_b32 v{T+4}, 0xff800000")
    a(f"s_mov_b32 s{S_IT}, 0")
    L_fl = a.label("L_at_fbl")
    a(f"{L_fl}:")
    rdK1(0, 0); rdK1(1, 0); rdK2(0)
    a("s_waitcnt lgkmcnt(0)")
    M12(0, 0, "0"); M12(1, 0, "0")
    a("s_nop 9")
    M3(0)
    a("s_nop 15"); a("s_nop 3")
    for k in range(0, 32, 2):
        a(f"v_max3_f32 v{T+4}, v{T+4}, v{V_S+k}, v{V_S+k+1}")
    a(f"v_add_u32 v{V_KA}, 5120, v{V_KA}")
    a(f"v_add_u32 v{V_K2A}, 5120, v{V_K2A}")
    a(f"s_add_u32 s{S_IT}, s{S_IT}, 1")
    a(f"s_cmp_lt_u32 s{S_IT}, 32")
    a(f"s_cbranch_scc1 {L_fl}")
    a(f"v_mov_b32 v{T+5}, v{T+4}")
    a("s_nop 1")
    a(f"v_permlane32_swap_b32 v{T+4}, v{T+5}")
    a("s_nop 1")
    a(f"v_max_f32 v{T+4}, v{T+4}, v{T+5}")
    for r in range(16):
        a(f"v_sub_f32 v{V_NM+r}, 0, v{T+4}")
    set_addrs()
    zero_state()
    a(f"s_branch {L_start}")
    return V_END

def gen_conv(a, done_label):
    S_WS = 4
    SRD_W = 8
    S_HEAD = 16
    S_CW = 17
    S_T0, S_T1, S_T2 = 19, 20, 21
    S_SO, S_KV = 22, 23
    S_CH0, S_NCH = 24, 25
    S_N = 26
    S_EM = 28
    S_C1, S_C2 = 30, 31
    S_Y1, S_Y2 = 32, 33
    S_OFF = 34
    SRD_OUT = 12
    L = 1
    V_G = 2
    V_A0, V_B0 = 3, 4
    V_AA, V_B1A, V_B2A = 5, 6, 7
    V_PA, V_PR = 8, 9
    V_Z = 10
    T = 11
    V_FA, V_F1, V_F2 = 16, 32, 48
    V_R1, V_R2 = 64, 80
    V_Y = 96
    V_CR = 120
    V_END = 144
    a("s_setprio 3")
    a(f"s_sub_u32 s{S_CW}, s3, 8")
    a(f"v_lshlrev_b32 v{V_G}, 4, v{L}")
    a(f"s_mul_i32 s{S_KV}, s{S_HEAD}, {KV_HEAD}")
    a(f"s_lshl_b32 s{S_T0}, s{S_CW}, 12")
    a(f"s_add_u32 s{S_SO}, s{S_KV}, s{S_T0}")
    a(f"s_mov_b32 m0, s{S_T0}")
    a(f"s_mov_b32 s{SRD_W+2}, {WS_END}")
    a(f"s_mov_b32 s{SRD_W+3}, 0x00020000")
    a(f"s_and_b32 s{S_CH0}, s2, 7")
    a(f"s_lshl_b32 s{S_CH0}, s{S_CH0}, 3")
    a(f"s_lshr_b32 s{S_T1}, s2, 5")
    a(f"s_add_u32 s{S_CH0}, s{S_CH0}, s{S_T1}")
    a(f"s_mul_i32 s{S_CH0}, s{S_CH0}, 10")
    a(f"s_bfe_u32 s{S_T1}, s2, 0x20003")
    a(f"s_mul_i32 s{S_T2}, s{S_T1}, 3")
    a(f"s_min_u32 s{S_T2}, s{S_T2}, 8")
    a(f"s_add_u32 s{S_CH0}, s{S_CH0}, s{S_T2}")
    a(f"s_cmp_lt_u32 s{S_T1}, 2")
    a(f"s_cselect_b32 s{S_NCH}, 3, 2")
    a(f"s_cmp_eq_u32 s{S_T1}, 1")
    a(f"s_cselect_b32 s{S_OFF}, {CH_STRIDE}, 0")
    a(f"s_cselect_b32 s{S_OFF+2}, 0, {2*CH_STRIDE}")
    a(f"s_cselect_b32 s{S_C1}, 2, 0")
    a(f"s_cselect_b32 s{S_C2}, -2, 4")
    a(f"s_add_u32 s{S_OFF+1}, s{S_OFF}, {CH_STRIDE}")
    a(f"s_mov_b32 s{SRD_OUT+2}, {2048*2560}")
    a(f"s_mov_b32 s{SRD_OUT+3}, 0x00020000")
    a(f"s_waitcnt lgkmcnt(0)")
    a(f"s_mov_b64 s[{SRD_W}:{SRD_W+1}], s[{S_WS}:{S_WS+1}]")
    a(f"s_mov_b64 s[{SRD_OUT}:{SRD_OUT+1}], s[6:7]")
    def dma(n):
        for j in range(n):
            a(f"buffer_load_dwordx4 v{V_G}, s[{SRD_W}:{SRD_W+3}], s{S_SO} offen offset:{1024*j} lds")
    def adv(d):
        a(f"s_add_u32 m0, m0, {d}")
        a(f"s_add_u32 s{S_SO}, s{S_SO}, {d}")
    for blk in range(4):
        dma(4); adv(16384)
    a("s_waitcnt vmcnt(8)")
    a("s_barrier")
    for blk in range(4, 8):
        dma(4)
        if blk < 7: adv(16384)
    a(f"s_and_b32 s{S_T0}, s{S_CW}, 1")
    a(f"s_lshl_b32 s{S_T0}, s{S_T0}, 10")
    a(f"s_add_u32 m0, s{S_T0}, {128*1024}")
    a(f"s_add_u32 s{S_SO}, s{S_KV}, m0")
    dma(1)
    a(f"s_mul_i32 s{S_T0}, s{S_CW}, 7")
    a(f"s_min_u32 s{S_T0}, s{S_T0}, 19")
    a(f"s_lshl_b32 s{S_T0}, s{S_T0}, 10")
    a(f"s_add_u32 m0, s{S_T0}, {CV}")
    a(f"s_mul_i32 s{S_SO}, s{S_CH0}, {CH_STRIDE}")
    a(f"s_add_u32 s{S_SO}, s{S_SO}, s{S_T0}")
    a(f"s_add_u32 s{S_SO}, s{S_SO}, {WS_CH}")
    dma(4); adv(4096); dma(3)
    a(f"v_bfe_u32 v{T}, v{L}, 4, 1")
    a(f"v_lshrrev_b32 v{T+1}, 5, v{L}")
    a(f"v_bfe_u32 v{T+2}, v{L}, 2, 2")
    a(f"v_and_b32 v{T+3}, 3, v{L}")
    a(f"v_lshl_add_u32 v{T+4}, v{T}, 2, v{T+3}")
    a(f"v_sub_u32 v{V_A0}, v{T+4}, v{T+1}")
    a(f"v_lshlrev_b32 v{V_A0}, 3, v{V_A0}")
    a(f"v_sub_u32 v{V_A0}, v{V_A0}, v{T+2}")
    a(f"v_lshlrev_b32 v{V_A0}, 3, v{V_A0}")
    a(f"v_add_u32 v{V_A0}, {CV+88}, v{V_A0}")
    a(f"v_add_u32 v{V_B0}, v{T+4}, v{T+2}")
    a(f"v_lshl_add_u32 v{V_B0}, v{T+1}, 3, v{V_B0}")
    a(f"v_lshlrev_b32 v{V_B0}, 3, v{V_B0}")
    a(f"v_add_u32 v{V_B0}, {CV+CH_U-56}, v{V_B0}")
    a(f"v_add_u32 v{T}, 1, v{L}")
    a(f"v_and_b32 v{T}, 63, v{T}")
    a(f"s_lshl_b32 s{S_T0}, s{S_CW}, 6")
    a(f"s_add_u32 s{S_T1}, s{S_T0}, {PRIV}")
    a(f"v_lshl_add_u32 v{V_PA}, v{T}, 2, s{S_T1}")
    a(f"s_sub_u32 s{S_T1}, {PRIV+7*64}, s{S_T0}")
    a(f"v_lshl_add_u32 v{V_PR}, v{T}, 2, s{S_T1}")
    for r in range(4):
        a(f"v_mov_b32 v{V_CR+r}, 0")
    a(f"v_mul_u32_u24 v{T}, 528, v{L}")
    a(f"s_mov_b64 exec, 0xf")
    a(f"ds_write_b128 v{T}, {vr(V_CR,4)} offset:{PRIV-131072}" if False else f"v_add_u32 v{T}, {PRIV}, v{T}")
    a(f"ds_write_b128 v{T}, {vr(V_CR,4)}")
    a(f"s_mov_b64 exec, -1")
    a(f"s_mov_b32 s{S_EM}, 0")
    a(f"s_brev_b32 s{S_EM+1}, 1")
    a(f"s_lshl_b32 s{S_T0}, s{S_CH0}, 1")
    a(f"s_add_u32 s{S_T0}, s{S_T0}, s{S_C1}")
    a(f"s_add_u32 s{S_T0}, s{S_T0}, 1280")
    a(f"s_mul_i32 s{S_T1}, s{S_CW}, {256*2560}")
    a(f"s_add_u32 s{S_Y1}, s{S_T0}, s{S_T1}")
    a(f"s_sub_u32 s{S_Y2}, s{S_T0}, s{S_T1}")
    a(f"s_add_u32 s{S_Y2}, s{S_Y2}, {7*256*2560}")
    a(f"s_lshl_b32 s{S_T1}, s{S_CW}, 9")
    a(f"s_sub_u32 s{S_T2}, {7*512}, s{S_T1}")
    stamp(a, 2)
    a("s_waitcnt vmcnt(0) lgkmcnt(0)")
    stamp(a, 3)
    a("s_barrier")
    stamp(a, 4)
    a(f"s_setprio {os.environ.get('CVPRIO', '3')}")

    def rds(i, both):
        for rd in range(2):
            a(f"ds_read_b64_tr_b16 {vr(V_FA+4*i+2*rd,2)}, v{V_AA} offset:{128*i+32*(1-rd)}")
        for rd in range(2):
            a(f"ds_read_b64_tr_b16 {vr(V_F2+4*i+2*rd,2)}, v{V_B2A} offset:{128*(3-i)+32*rd}")
        if both:
            for rd in range(2):
                a(f"ds_read_b64_tr_b16 {vr(V_F1+4*i+2*rd,2)}, v{V_B1A} offset:{128*(3-i)+32*rd}")
    def body(both, first):
        n = 6 if both else 4
        rds(0, both); rds(1, both)
        for i in range(4):
            if i < 2:
                if not both:
                    rds(i+2, both); a(f"s_waitcnt lgkmcnt({2*n})")
                else:
                    a(f"s_waitcnt lgkmcnt({n})")
            else:
                a(f"s_waitcnt lgkmcnt({n*(3-i)})")
            c2 = "0" if (first and i == 0) else vr(V_R2, 16)
            c1 = "0" if (first and i == 0) else vr(V_R1, 16)
            a(f"v_mfma_f32_32x32x16_bf16 {vr(V_R2,16)}, {vr(V_FA+4*i,4)}, {vr(V_F2+4*i,4)}, {c2}")
            if both:
                if i < 2: rds(i+2, both)
                a(f"v_mfma_f32_32x32x16_bf16 {vr(V_R1,16)}, {vr(V_FA+4*i,4)}, {vr(V_F1+4*i,4)}, {c1}")
            if i == 1:
                a(f"v_add_u32 v{V_AA}, 512, v{V_AA}")
                a(f"v_add_u32 v{V_B2A}, -512, v{V_B2A}")
                if both: a(f"v_add_u32 v{V_B1A}, -512, v{V_B1A}")
    def flush(R, k, PA):
        ch = k // 2
        for step in (2, 1):
            for ap in range(4):
                a(f"v_add_f32_dpp v{R+4*ap+step}, v{R+4*ap+step+1}, v{R+4*ap+step} wave_shr:1 row_mask:0xf bank_mask:0xf")
        for ap in range(4):
            a(f"v_add_f32_dpp v{V_Y+4*k+ap}, v{R+4*ap+1}, v{R+4*ap} wave_shr:1 row_mask:0xf bank_mask:0xf bound_ctrl:0")
        a(f"s_mov_b64 exec, s[{S_EM}:{S_EM+1}]")
        for ap in range(4):
            a(f"ds_write_b128 v{PA}, {vr(R+4*ap,4)} offset:{528*ch+16*(ap+1)}")
        a(f"s_mov_b64 exec, -1")
    L_sync = a.label("L_cv_sync")
    for ch in range(3):
        if ch == 2:
            a(f"s_cmp_lt_u32 s{S_NCH}, 3")
            a(f"s_cbranch_scc1 {L_sync}")
        a(f"v_add_u32 v{V_AA}, s{S_OFF+ch}, v{V_A0}")
        a(f"s_add_u32 s{S_T0}, s{S_T1}, s{S_OFF+ch}")
        a(f"v_add_u32 v{V_B1A}, s{S_T0}, v{V_B0}")
        a(f"s_add_u32 s{S_T0}, s{S_T2}, s{S_OFF+ch}")
        a(f"v_add_u32 v{V_B2A}, s{S_T0}, v{V_B0}")
        body(True, True)
        l1 = a.label("L_cv_p1"); l2 = a.label("L_cv_p2"); l2s = a.label("L_cv_p2s")
        a(f"s_mov_b32 s{S_N}, s{S_CW}")
        a(f"s_cmp_eq_u32 s{S_N}, 0")
        a(f"s_cbranch_scc1 {l2s}")
        a(f"{l1}:")
        body(True, False)
        a(f"s_sub_u32 s{S_N}, s{S_N}, 1")
        a(f"s_cmp_lg_u32 s{S_N}, 0")
        a(f"s_cbranch_scc1 {l1}")
        a(f"{l2s}:")
        a(f"s_lshl_b32 s{S_N}, s{S_CW}, 1")
        a(f"s_sub_u32 s{S_N}, 7, s{S_N}")
        a(f"{l2}:")
        body(False, False)
        a(f"s_sub_u32 s{S_N}, s{S_N}, 1")
        a(f"s_cmp_lg_u32 s{S_N}, 0")
        a(f"s_cbranch_scc1 {l2}")
        if ch < 2: stamp(a, 8+2*ch)
        flush(V_R1, 2*ch, V_PA)
        flush(V_R2, 2*ch+1, V_PR)
        if ch < 2: stamp(a, 9+2*ch)
    a(f"{L_sync}:")
    stamp(a, 5)
    a(f"v_mov_b32 v{T}, {CNT}")
    a(f"v_mov_b32 v{T+1}, 1")
    a("s_waitcnt lgkmcnt(0)")
    a("s_mov_b64 exec, 1")
    a(f"ds_add_u32 v{T}, v{T+1}")
    a("s_mov_b64 exec, -1")
    L_spin = a.label("L_cv_spin")
    a(f"{L_spin}:")
    a(f"ds_read_b32 v{T+2}, v{T}")
    a("s_waitcnt lgkmcnt(0)")
    a(f"v_readfirstlane_b32 s{S_T0}, v{T+2}")
    a(f"s_cmp_lt_u32 s{S_T0}, 4")
    a("s_sleep 1")
    a(f"s_cbranch_scc1 {L_spin}")
    stamp(a, 6)
    for ch in range(3):
        if ch == 2:
            a(f"v_add_u32 v{V_PA}, 1056, v{V_PA}")
            a(f"v_add_u32 v{V_PR}, 1056, v{V_PR}")
        for w, PA in ((0, V_PA), (1, V_PR)):
            for hf in range(2):
                o = 132*(ch % 2) + 8*hf
                a(f"ds_read2_b32 {vr(V_CR+8*ch+4*w+2*hf,2)}, v{PA} offset0:{o} offset1:{o+4}")
    a(f"s_mul_i32 s{S_T0}, s{S_CW}, 7")
    a(f"s_min_u32 s{S_T0}, s{S_T0}, 18")
    a(f"s_lshl_b32 s{S_T0}, s{S_T0}, 10")
    a(f"s_add_u32 m0, s{S_T0}, {CV}")
    a(f"s_add_u32 s{S_SO}, s{S_KV}, m0")
    dma(4); adv(4096); dma(3)
    a("s_waitcnt lgkmcnt(0)")
    a("s_mov_b64 exec, 1")
    a(f"ds_add_rtn_u32 v{T+2}, v{T}, v{T+1}")
    a("s_mov_b64 exec, 7")
    for r in range(0, 24, 2):
        a(f"v_pk_add_f32 {vr(V_Y+r,2)}, {vr(V_Y+r,2)}, {vr(V_CR+r,2)}")
    a("s_mov_b64 exec, -1")
    a("s_waitcnt lgkmcnt(0)")
    a(f"v_readfirstlane_b32 s{S_T0}, v{T+2}")
    a(f"v_mul_u32_u24 v{T+3}, 2560, v{L}")
    L_nl = a.label("L_cv_notlast")
    a(f"s_cmp_lg_u32 s{S_T0}, 7")
    a(f"s_cbranch_scc1 {L_nl}")
    a(f"s_mov_b32 m0, {CV+25*1024}")
    a(f"s_add_u32 s{S_SO}, s{S_KV}, m0")
    dma(4); adv(4096); dma(1)
    a(f"{L_nl}:")
    L_fin = a.label("L_cv_fin"); L_two = a.label("L_cv_two")
    SC = os.environ.get("YSC", "")
    for w, sy in ((0, S_Y1), (1, S_Y2)):
        a(f"s_mov_b32 s{S_T0}, s{sy}")
        for ap in range(4):
            y = V_Y + 4*w + ap
            a(f"v_cvt_pk_bf16_f32 v{y}, v{y}, v{y+8}")
            a(f"buffer_store_dword v{y}, v{T+3}, s[{SRD_OUT}:{SRD_OUT+3}], s{S_T0} offen {SC}")
            if ap < 3: a(f"s_add_u32 s{S_T0}, s{S_T0}, {64*2560}")
    a(f"s_cmp_lt_u32 s{S_NCH}, 3")
    a(f"s_cbranch_scc1 {L_two}")
    for w, sy in ((0, S_Y1), (1, S_Y2)):
        a(f"s_add_u32 s{S_T0}, s{sy}, s{S_C2}")
        for ap in range(4):
            y = V_Y + 16 + 4*w + (ap & 2)
            if ap % 2 == 0:
                a(f"v_cvt_pk_bf16_f32 v{y}, v{y}, v{y+1}")
                a(f"buffer_store_short v{y}, v{T+3}, s[{SRD_OUT}:{SRD_OUT+3}], s{S_T0} offen {SC}")
            else:
                a(f"buffer_store_short_d16_hi v{y}, v{T+3}, s[{SRD_OUT}:{SRD_OUT+3}], s{S_T0} offen {SC}")
            if ap < 3: a(f"s_add_u32 s{S_T0}, s{S_T0}, {64*2560}")
    a("s_waitcnt vmcnt(16)")
    a(f"s_branch {L_fin}")
    a(f"{L_two}:")
    a("s_waitcnt vmcnt(8)")
    a(f"{L_fin}:")
    stamp(a, 7)
    a("s_barrier")
    a(f"s_branch {done_label}")
    return V_END

def phase2(a, done_label):
    a(f"s_load_dwordx2 s[4:5], s[0:1], {KA['ws']}")
    a(f"s_load_dwordx2 s[6:7], s[0:1], {KA['out']}")
    a("v_lshrrev_b32 v2, 6, v0")
    a("v_and_b32 v1, 63, v0")
    a("v_readfirstlane_b32 s3, v2")
    a(f"s_and_b32 s16, s2, 7")
    a(f"s_lshl_b32 s16, s16, 2")
    a(f"s_bfe_u32 s17, s2, 0x20003")
    a(f"s_add_u32 s16, s16, s17")
    a(f"s_movk_i32 s28, {(1<<1)|(1<<6)}")
    a("s_cmp_lt_u32 s3, 8")
    a("s_cbranch_scc1 L_p2_attn")
    n1 = gen_conv(a, done_label)
    a("L_p2_attn:")
    n2 = gen_attn(a, done_label)
    return max(n1, n2)
```

```python
from asmlib import *

def gen_out_body(a, done_label="L_out_done"):
    S_WO, S_OUT, S_WS = 4, 6, 8
    SRD_W, SRD_O, SRD_OUT = 12, 16, 20
    S_TM, S_TN, S_WAVE = 24, 25, 26
    S_T0, S_T1, S_T2 = 27, 28, 29
    S_SW, S_SO = 30, 31
    V_L = 1
    V_VW = 2
    V_OA = 7
    V_WA = 8
    V_CA = 10
    V_T = 11
    V_ACC = 16
    V_WF = 36
    V_OF = 76
    V_END = 156
    T = V_T; L = V_L
    a(f"s_load_dwordx2 s[{S_WO}:{S_WO+1}], s[0:1], {KA['wo']}")
    a(f"s_load_dwordx2 s[{S_OUT}:{S_OUT+1}], s[0:1], {KA['out']}")
    a(f"s_load_dwordx2 s[{S_WS}:{S_WS+1}], s[0:1], {KA['ws']}")
    a(f"v_lshrrev_b32 v{T}, 6, v0")
    a(f"v_and_b32 v{L}, 63, v0")
    a(f"v_readfirstlane_b32 s{S_WAVE}, v{T}")
    a(f"s_and_b32 s{S_T0}, s2, 7")
    a(f"s_lshl_b32 s{S_T0}, s{S_T0}, 2")
    a(f"s_bfe_u32 s{S_T1}, s2, 0x20003")
    a(f"s_add_u32 s{S_TM}, s{S_T0}, s{S_T1}")
    a(f"s_lshr_b32 s{S_TN}, s2, 5")
    a(f"s_lshl_b32 s{S_T0}, s{S_TM}, 1")
    a(f"s_lshr_b32 s{S_T1}, s{S_WAVE}, 1")
    a(f"s_add_u32 s{S_T0}, s{S_T0}, s{S_T1}")
    a(f"s_mul_i32 s{S_T0}, s{S_T0}, 40960")
    a(f"s_and_b32 s{S_T1}, s{S_WAVE}, 1")
    a(f"s_lshl_b32 s{S_T1}, s{S_T1}, 8")
    a(f"s_add_u32 s{S_T0}, s{S_T0}, s{S_T1}")
    a(f"v_lshrrev_b32 v{T}, 4, v{L}")
    a(f"v_and_b32 v{T+1}, 15, v{L}")
    a(f"v_lshlrev_b32 v{V_OA}, 9, v{T}")
    a(f"v_lshl_add_u32 v{V_OA}, v{T+1}, 4, v{V_OA}")
    a(f"v_add_u32 v{V_OA}, s{S_T0}, v{V_OA}")
    a(f"s_mul_i32 s{S_T0}, s{S_TN}, 160")
    for j in range(5):
        a(f"v_add_u32 v{T+2}, {64*j}, v{L}")
        a(f"v_mul_u32_u24 v{T+3}, 205, v{T+2}")
        a(f"v_lshrrev_b32 v{T+3}, 11, v{T+3}")
        a(f"v_mad_i32_i24 v{T+2}, v{T+3}, -10, v{T+2}")
        a(f"v_lshrrev_b32 v{T+4}, 1, v{T+3}")
        a(f"v_xor_b32 v{T+4}, v{T+4}, v{T+3}")
        a(f"v_and_b32 v{T+4}, 4, v{T+4}")
        a(f"v_mul_u32_u24 v{T+4}, 3, v{T+4}")
        a(f"v_xor_b32 v{T+3}, v{T+3}, v{T+4}")
        a(f"v_mul_u32_u24 v{T+3}, 1280, v{T+3}")
        a(f"v_lshl_add_u32 v{T+3}, v{T+2}, 4, v{T+3}")
        a(f"v_add_u32 v{V_VW+j}, s{S_T0}, v{T+3}")
    a(f"s_mul_i32 s{S_SW}, s{S_WAVE}, {32*1280}")
    a(f"s_mul_i32 s{S_T2}, s{S_WAVE}, 5120")
    a(f"s_mov_b32 s{S_SO}, 0")
    a(f"s_waitcnt lgkmcnt(0)")
    make_srd(a, SRD_W, S_WO, S_WO+1, 640*640*2)
    make_srd(a, SRD_O, S_WS, S_WS+1, O_BYTES, off=WS_O)
    make_srd(a, SRD_OUT, S_OUT, S_OUT+1, 2048*1280*2)
    stamp(a, 2)
    for r in range(5):
        for j in range(5):
            a(f"s_add_u32 m0, s{S_T2}, {r*20480 + j*1024}")
            a("s_nop 0")
            a(f"buffer_load_dwordx4 v{V_VW+j}, s[{SRD_W}:{SRD_W+3}], s{S_SW} offen lds")
        a(f"s_add_u32 s{S_SW}, s{S_SW}, {4*32*1280}")
        for q in range(4):
            s = 4*r+q
            a(f"buffer_load_dwordx4 {vr(V_OF+4*s,4)}, v{V_OA}, s[{SRD_O}:{SRD_O+3}], s{S_SO} offen offset:{2048*(q&1)}")
            if q & 1:
                a(f"s_add_u32 s{S_SO}, s{S_SO}, 4096")
    stamp(a, 3)
    a(f"v_lshrrev_b32 v{T+2}, 5, v{L}")
    a(f"v_lshlrev_b32 v{T+2}, 4, v{T+2}")
    a(f"v_bfe_u32 v{T+3}, v{L}, 2, 3")
    a(f"v_add_u32 v{T+2}, v{T+2}, v{T+3}")
    a(f"v_mul_u32_u24 v{T+2}, 160, v{T+2}")
    a(f"v_and_b32 v{T+3}, 3, v{L}")
    a(f"v_lshl_add_u32 v{V_WA}, v{T+3}, 3, v{T+2}")
    a(f"v_add_u32 v{V_WA+1}, 51200, v{V_WA}")
    a(f"s_lshl_b32 s{S_T1}, s{S_TM}, 2")
    a(f"s_add_u32 s{S_T1}, s{S_T1}, s{S_WAVE}")
    a(f"s_mul_i32 s{S_T1}, s{S_T1}, {16*2560}")
    a(f"s_add_u32 s{S_T1}, s{S_T1}, s{S_T0}")
    a(f"v_mul_u32_u24 v{V_CA}, 2560, v{T+1}")
    a(f"v_lshl_add_u32 v{V_CA}, v{T}, 3, v{V_CA}")
    a(f"v_add_u32 v{V_CA}, s{S_T1}, v{V_CA}")
    for r in range(20):
        a(f"v_mov_b32 v{V_ACC+r}, 0")
    def reads(s):
        fb = V_WF + 20*(s % 2)
        hi = 1 if s >= 10 else 0
        for nt in range(5):
            for rd in range(2):
                a(f"ds_read_b64_tr_b16 {vr(fb+4*nt+2*rd,2)}, v{V_WA+hi} offset:{(s-10*hi)*5120+rd*1280+32*nt}")
    def mf(s):
        fb = V_WF + 20*(s % 2)
        for nt in range(5):
            acc = vr(V_ACC+4*nt, 4)
            a(f"v_mfma_f32_16x16x32_bf16 {acc}, {vr(fb+4*nt,4)}, {vr(V_OF+4*s,4)}, {acc}")
    for r in range(5):
        a(f"s_waitcnt vmcnt({9*(4-r)})")
        a("s_barrier")
        stamp(a, 4+r)
        for q in range(4):
            s = 4*r+q
            reads(s)
            if s > 0:
                a("s_waitcnt lgkmcnt(10)")
                mf(s-1)
    a("s_waitcnt lgkmcnt(0)")
    mf(19)
    a("s_nop 7")
    stamp(a, 9)
    for nt in range(5):
        a(f"v_cvt_pk_bf16_f32 v{V_WF+2*nt}, v{V_ACC+4*nt}, v{V_ACC+4*nt+1}")
        a(f"v_cvt_pk_bf16_f32 v{V_WF+2*nt+1}, v{V_ACC+4*nt+2}, v{V_ACC+4*nt+3}")
        a(f"buffer_store_dwordx2 {vr(V_WF+2*nt,2)}, v{V_CA}, s[{SRD_OUT}:{SRD_OUT+3}], 0 offen offset:{32*nt}")
    return V_END

assert all((i*205)>>11 == i//10 for i in range(320))
```

```python
import sys, os
from asmlib import *
import k1, k1aux
import k2
from k_out import gen_out_body

HDR = open("concat_heads__mha_block__ssm_conv_s4__prompt.s.ref").read().split("; Override launch")[0]

def wrap(name, nwg, body_fn, **kw):
    a = Asm()
    done = f"L_{name}_done"
    a(f"s_cmp_ge_u32 s2, {nwg}")
    a(f"s_cbranch_scc1 {done}_x")
    stamp_begin(a)
    if os.environ.get("PREF", "1") == "1":
        a(f"s_getpc_b64 s[96:97]")
        a(f"L_{name}_pc:")
        a(f"v_lshlrev_b32 v1, 6, v0")
        a(f"v_min_u32 v1, L_{name}_end-L_{name}_pc-4, v1")
        a(f"global_load_dword v@PF@, v1, s[96:97]")
    nv = body_fn(a, done_label=done, **kw)
    a(f"{done}:")
    stamp(a, 13)
    stamp_end(a)
    a(f"{done}_x:")
    a("s_endpgm")
    a(f"L_{name}_end:")
    a.lines = [l.replace("@PF@", str(nv)) for l in a.lines]
    nv += 1
    STAMP["kid"] += 1
    if STAMP["on"]:
        a.lines = [l.replace("@SA@", str(nv)).replace("@SB@", str(nv+1)).replace("@SC@", str(nv+2)) for l in a.lines]
        nv += 3
    return kernel_header(name) + a.text(), nv

def phase1(a, done_label):
    a("v_lshrrev_b32 v2, 6, v0")
    a("s_nop 0")
    a("v_readfirstlane_b32 s3, v2")
    a("s_cmp_ge_u32 s3, 4")
    a("s_cbranch_scc1 L_p1_aux")
    a("s_cmp_ge_u32 s2, 240" if not os.environ.get("NOGEMM") else "s_cmp_ge_u32 s2, 0")
    a(f"s_cbranch_scc1 {done_label}")
    n1 = k1.gen_gemm(a, done_label)
    a("L_p1_aux:")
    PFS = int(os.environ.get("PFS", "7"))
    if PFS:
        ch = 64 << PFS
        a("s_load_dwordx4 s[40:43], s[0:1], 0")
        a("s_lshr_b32 s44, s2, 3")
        a("s_lshl_b32 s44, s44, 2")
        a("s_add_u32 s44, s44, s3")
        a("s_sub_u32 s44, s44, 4")
        a("s_and_b32 s45, s2, 7")
        a("v_and_b32 v2, 63, v0")
        a(f"v_lshlrev_b32 v2, {PFS}, v2")
        nx = 327680 // ch
        a(f"s_mul_i32 s46, s44, {ch}")
        a(f"s_mul_i32 s47, s45, 327680")
        a(f"s_add_u32 s47, s47, s46")
        a(f"s_mul_i32 s45, s45, 307200")
        a(f"s_add_u32 s46, s46, s45")
        if PFS == 7:
            a(f"s_sub_u32 s46, s46, {nx*ch}")
        a(f"s_mov_b32 s50, {2048*640*2}")
        a(f"s_mov_b32 s51, 0x00020000")
        a(f"s_mov_b32 s54, {640*1920*2}")
        a(f"s_mov_b32 s55, 0x00020000")
        a("s_waitcnt lgkmcnt(0)")
        a("s_mov_b64 s[48:49], s[40:41]")
        a("s_mov_b64 s[52:53], s[42:43]")
        a(f"s_cmp_ge_u32 s44, {nx}")
        a("s_cbranch_scc1 L_pf_w")
        a("buffer_load_dword v@PF@, v2, s[48:51], s47 offen")
        if PFS == 7:
            a("s_branch L_pf_done")
        a("L_pf_w:")
        a(f"s_cmp_ge_u32 s44, {2*nx if PFS == 7 else 75}")
        a("s_cbranch_scc1 L_pf_done")
        a("buffer_load_dword v@PF@, v2, s[52:55], s46 offen")
        a("L_pf_done:")
    if os.environ.get("NOAUX"):
        a(f"s_branch {done_label}")
    a("s_sub_u32 s3, s3, 4")
    a("s_lshl_b32 s4, s3, 8")
    a("s_add_u32 s4, s4, s2")
    a(f"s_mul_i32 s5, s3, {k1.AUX_W}")
    a(f"s_add_u32 s5, s5, {k1.AUX_LDS}")
    a("s_cmp_ge_u32 s4, 640")
    a("s_cbranch_scc1 L_p1_utr")
    n2 = k1aux.gen_kgen(a, done_label, 4, 5)
    a("L_p1_utr:")
    a("s_sub_u32 s4, s4, 640")
    a("s_cmp_ge_u32 s4, 320")
    a(f"s_cbranch_scc1 {done_label}")
    n3 = k1aux.gen_utr(a, done_label, 4, 5)
    return max(n1, n2, n3)

def build(path):
    ks = []
    t, nv = wrap("qkv_kernel", 256, phase1)
    ks.append(("qkv_kernel", t, nv, 256, 512, 163840))
    t, nv = wrap("attn_kernel", 256, k2.phase2)
    ks.append(("attn_kernel", t, min(nv, 168), 256, 768, 163840))
    t, nv = wrap("out_kernel", 256, gen_out_body)
    ks.append(("out_kernel", t, nv, 256, 256, 102400))
    s = HDR
    for name, t, nv, g, b, lds in ks:
        s += f"; @launch kernel={name} grid=({g},1,1) block=({b},1,1) lds={lds}\n"
    s += '.amdgcn_target "amdgcn-amd-amdhsa--gfx950"\n.text\n'
    for name, t, nv, g, b, lds in ks:
        s += t
    s += '.section .rodata,"a"\n'
    for name, t, nv, g, b, lds in ks:
        s += kernel_desc(name, nv)
    open(path, "w").write(s)

if __name__ == "__main__":
    if len(sys.argv) > 2 and sys.argv[2] == "stamp":
        STAMP["on"] = True
    build(sys.argv[1] if len(sys.argv) > 1 else "concat_heads__mha_block__ssm_conv_s4__prompt.s")
```

```python
import sys, os, subprocess
sys.path.insert(0, "cdna_kernels")

HEAD = """; @launch grid=({grid},1,1) block=({block},1,1) lds={lds}
.amdgcn_target "amdgcn-amd-amdhsa--gfx950"
.text
.globl mb_kernel
.p2align 8
.type mb_kernel,@function
mb_kernel:
"""
TAIL = """
s_endpgm
.section .rodata,"a"
.p2align 6
.amdhsa_kernel mb_kernel
  .amdhsa_next_free_vgpr {vgpr}
  .amdhsa_next_free_sgpr 102
  .amdhsa_accum_offset {accum}
  .amdhsa_group_segment_fixed_size 0
  .amdhsa_kernarg_size 16
  .amdhsa_user_sgpr_count 2
  .amdhsa_user_sgpr_kernarg_segment_ptr 1
  .amdhsa_system_sgpr_workgroup_id_x 1
.end_amdhsa_kernel
"""

def timed_kernel(body, iters, pre="", grid=256, block=256, lds=0, vgpr=128, accum=128):
    s = HEAD.format(grid=grid, block=block, lds=lds)
    s += f"""
    s_load_dwordx2 s[4:5], s[0:1], 0
    s_load_dwordx2 s[6:7], s[0:1], 8
    s_waitcnt lgkmcnt(0)
    s_mov_b32 s8, s4
    s_mov_b32 s9, s5
    s_mov_b32 s10, 0x100000
    s_mov_b32 s11, 0x00020000
    s_mov_b32 s12, s6
    s_mov_b32 s13, s7
    s_mov_b32 s14, 0x4000000
    s_mov_b32 s15, 0x00020000
    v_lshrrev_b32 v1, 6, v0
    s_lshl_b32 s3, s2, 4
    v_add_u32 v1, s3, v1
    v_lshlrev_b32 v127, 2, v1
{pre}
    s_mov_b32 s20, {iters}
    s_barrier
    s_memtime s[16:17]
    s_waitcnt lgkmcnt(0)
L_loop:
{body}
    s_sub_u32 s20, s20, 1
    s_cmp_lg_u32 s20, 0
    s_cbranch_scc1 L_loop
    s_nop 15
    s_nop 15
    s_memtime s[18:19]
    s_waitcnt lgkmcnt(0)
    s_sub_u32 s18, s18, s16
    v_mov_b32 v126, s18
    buffer_store_dword v126, v127, s[8:11], 0 offen
    s_waitcnt vmcnt(0)
"""
    s += TAIL.format(vgpr=vgpr, accum=accum)
    return s

def build(name, asm, n_ptrs=2):
    import re
    from cdna_launch import with_harness_metadata
    full = with_harness_metadata(asm, "mb_kernel", n_ptrs)
    open(name + ".s", "w").write(full)
    r = subprocess.run(["clang", "-x", "assembler", "-target", "amdgcn-amd-amdhsa", "-mcpu=gfx950", name + ".s", "-o", name + ".co"], capture_output=True, text=True)
    if r.returncode != 0:
        print(r.stderr); raise SystemExit(1)
    os.remove(name + ".s")
```

```python
import json
from mb_lib import *
specs = []
def add(name, body, units, iters=200, pre="", blocks=(256,512,1024), vgpr=128, rep=8):
    body = "\n".join([body]*rep)
    for b in blocks:
        asm = timed_kernel(body, iters, pre=pre, block=b, vgpr=vgpr, accum=vgpr)
        fn = f"{name}_{b}"
        build(fn, asm)
        specs.append(dict(name=fn, co=fn+".co", grid=256, block=b, iters=iters, units=units*rep))
pre = "\n".join(f"v_mov_b32 v{i}, 0.5" for i in range(2,126)) + "\ns_mov_b32 s30, 0x07060302\ns_mov_b32 s31, 0xffff0000\n"
ops = {
 "add32": "v_add_f32 v{d}, v{x}, v{y}",
 "add64": "v_add_f32_e64 v{d}, v{x}, v{y}",
 "fma": "v_fma_f32 v{d}, v{x}, v{y}, v{y}",
 "mul": "v_mul_f32 v{d}, v{x}, v{y}",
 "max": "v_max_f32 v{d}, v{x}, v{y}",
 "mov": "v_mov_b32 v{d}, v{x}",
 "and": "v_and_b32 v{d}, v{x}, v{y}",
 "or": "v_or_b32 v{d}, v{x}, v{y}",
 "lshr": "v_lshrrev_b32 v{d}, 16, v{y}",
 "addu": "v_add_u32 v{d}, v{x}, v{y}",
 "andor": "v_and_or_b32 v{d}, v{x}, s31, v{y}",
 "lshlor": "v_lshl_or_b32 v{d}, v{x}, 16, v{y}",
 "bfi": "v_bfi_b32 v{d}, s31, v{x}, v{y}",
 "alignbit": "v_alignbit_b32 v{d}, v{x}, v{y}, 16",
 "alignbyte": "v_alignbyte_b32 v{d}, v{x}, v{y}, 2",
 "pack": "v_pack_b32_f16 v{d}, v{x}, v{y} op_sel:[1,1,0]",
 "cndmask": "v_cndmask_b32 v{d}, v{x}, v{y}, vcc",
 "pkmov": "v_pk_mov_b32 v[{d2}:{d2+1}], v[{x}:{x+1}], v[{x}:{x+1}]",
 "pkadd16": "v_pk_add_u16 v{d}, v{x}, v{y} op_sel:[1,0] op_sel_hi:[1,1]",
 "pkmax16": "v_pk_max_u16 v{d}, v{x}, v{y} op_sel:[1,0] op_sel_hi:[0,1]",
 "pkmad16": "v_pk_mad_u16 v{d}, v{x}, v{y}, v{y}",
 "pkfma16": "v_pk_fma_f16 v{d}, v{x}, v{y}, v{y}",
 "mixlo": "v_fma_mixlo_f16 v{d}, v{x}, v{y}, v{y}",
 "cvtf16": "v_cvt_f16_f32 v{d}, v{x}",
 "bitop3": "v_bitop3_b32 v{d}, v{x}, v{y}, s31 bitop3:0xca",
 "orsdwa": "v_or_b32_sdwa v{d}, v{x}, v{y} dst_sel:DWORD dst_unused:UNUSED_PAD src0_sel:WORD_1 src1_sel:DWORD",
 "fmac": "v_fmac_f32 v{d}, v{x}, v{y}",
 "cvtfp8": "v_cvt_pk_fp8_f32 v{d}, v{x}, v{y}",
 "madu24": "v_mad_u32_u24 v{d}, v{x}, v{y}, v{y}",
 "dpp": "v_mov_b32_dpp v{d}, v{x} quad_perm:[1,0,3,2] row_mask:0xf bank_mask:0xf",
}
for n, p in ops.items():
    add("op_"+n, "\n".join(eval("f'''"+p+"'''", dict(d=32+i, d2=32+2*(i%8), x=64+2*i, y=65+2*i)) for i in range(16)), 16, pre=pre)
json.dump(specs, open("specs11.json","w"))
```
